```python
import torch

def _softmax(x, axis=-1):
    return torch.softmax(x, dim=axis)
def _gelu(x):
    return torch.nn.functional.gelu(x, approximate="tanh")
def _silu(x):
    return torch.nn.functional.silu(x)
def _sigmoid(x):
    return torch.sigmoid(x)
def _layernorm(x, axis=-1, eps=1e-5):
    m = x.mean(dim=axis, keepdim=True)
    v = x.var(dim=axis, keepdim=True, unbiased=False)
    return (x - m) / torch.sqrt(v + eps)
def _scatter_add(tgt, idx, src, axis=0):
    return tgt.clone().index_add_(axis, idx, src)
def _segment_sum(src, seg, n):
    out = torch.zeros((n,) + src.shape[1:], dtype=src.dtype)
    return out.index_add_(0, seg, src)
def _pad(x, pw):
    flat = tuple(v for pair in reversed(pw) for v in pair)
    return torch.nn.functional.pad(x, flat)

kernel_name = 'recurrent_scan__compressed_kv_cla__moe_arch_mod__decode'

def setup_inputs():

    _w = (lambda a: (lambda t: t.to(torch.bfloat16) if t.is_floating_point() else t)(torch.as_tensor(a)))
    def _A_setup():
        B, H, Sq, Sk, D, M = 4, 32, 1, 4096, 128, 512
        Dc = 4 * D
        return {
            "x": _w((lambda *s: torch.randn(*s, dtype=torch.bfloat16) * 0.05)(B, Sq, M)),
            "c_kv": _w((lambda *s: torch.randn(*s, dtype=torch.bfloat16) * 0.8)(B, Sk, Dc)),
            "w_q": _w((lambda *s: torch.randn(*s, dtype=torch.bfloat16) * 1.6)(M, H, D) * (M ** -0.5)),
            "w_uk": _w((lambda *s: torch.randn(*s, dtype=torch.bfloat16) * 1.6)(Dc, H, D) * (Dc ** -0.5)),
            "w_uv": _w((lambda *s: torch.randn(*s, dtype=torch.bfloat16) * 0.8)(Dc, H, D) * (Dc ** -0.5)),
            "w_o": _w((lambda *s: torch.randn(*s, dtype=torch.bfloat16) * 0.8)(H, D, M) * ((H * D) ** -0.5)),
        }
    _A_in = _A_setup()

    def _B_setup():
        B, S, D, F, C = 4, 1, 512, 1792, 1
        return {
            "x": _w((lambda *s: torch.randn(*s, dtype=torch.bfloat16) * 0.05)(B, S, D)),
            "w_r": _w((lambda *s: torch.randn(*s, dtype=torch.bfloat16) * 0.8)(D)),
            "w_gate": _w((lambda *s: torch.randn(*s, dtype=torch.bfloat16) * 0.2)(D, F)),
            "w_up": _w((lambda *s: torch.randn(*s, dtype=torch.bfloat16) * 0.2)(D, F)),
            "w_down": _w((lambda *s: torch.randn(*s, dtype=torch.bfloat16) * 0.2)(F, D)),
        }
    _B_in = _B_setup()

    return {
        "A_x": _A_in["x"],
        "A_c_kv": _A_in["c_kv"],
        "A_w_q": _A_in["w_q"],
        "A_w_uk": _A_in["w_uk"],
        "A_w_uv": _A_in["w_uv"],
        "A_w_o": _A_in["w_o"],
        "B_x": _B_in["x"],
        "B_w_r": _B_in["w_r"],
        "B_w_gate": _B_in["w_gate"],
        "B_w_up": _B_in["w_up"],
        "B_w_down": _B_in["w_down"],
    }

def reference(A_x, A_c_kv, A_w_q, A_w_uk, A_w_uv, A_w_o, B_x, B_w_r, B_w_gate, B_w_up, B_w_down):
    def _A_ref(x, c_kv, w_q, w_uk, w_uv, w_o):
        B, Sq, M = x.shape[0], x.shape[1], x.shape[2]
        Sk = c_kv.shape[1]
        H, D = w_q.shape[1], w_q.shape[2]
        q = torch.einsum("bqm,mhd->bhqd", x, w_q)
        k = torch.einsum("bkc,chd->bhkd", c_kv, w_uk)
        v = torch.einsum("bkc,chd->bhkd", c_kv, w_uv)
        scores = torch.einsum("bhqd,bhkd->bhqk", q, k) * (D ** -0.5)
        off = Sk - Sq
        qi = torch.arange(Sq)[:, None]
        kj = torch.arange(Sk)[None, :]
        cmask = kj <= (qi + off)
        scores = torch.where(cmask[None, None], scores, -1e9)
        p = _softmax(scores, axis=-1)
        ctx = torch.einsum("bhqk,bhkd->bhqd", p, v)
        return torch.einsum("bhqd,hdm->bqm", ctx, w_o)

    def _B_ref(x, w_r, w_gate, w_up, w_down):
        B, S, D = x.shape
        C = 1
        r = x @ w_r
        idx = torch.argsort(-r, axis=-1)[:, :C]
        idx_e = (lambda x, n, axis: torch.repeat_interleave(x, n, dim=axis))(idx.reshape(B, C, 1), D, axis=2)
        x_sel = (lambda x, i, axis: torch.take_along_dim(x, i, dim=axis))(x, idx_e, axis=1)
        g = _silu(x_sel @ w_gate)
        u = x_sel @ w_up
        y = (g * u) @ w_down
        r_sel = _sigmoid((lambda x, i, axis: torch.take_along_dim(x, i, dim=axis))(r, idx, axis=1))
        y = y * r_sel.reshape(B, C, 1)
        b_off = (torch.arange(B) * S).reshape(B, 1)
        flat_idx = (idx + b_off).reshape(B * C)
        zero = (x * 0.0).reshape(B * S, D)
        upd = _scatter_add(zero, flat_idx, y.reshape(B * C, D), axis=0)
        return x + upd.reshape(B, S, D)

    x = A_x
    xn = _layernorm(x, axis=-1)
    s = _A_ref(xn, A_c_kv, A_w_q, A_w_uk, A_w_uv, A_w_o)
    g = _silu(_B_ref(xn, B_w_r, B_w_gate, B_w_up, B_w_down))
    return x + s * g
```

```python
import sys, os
NAME = "recurrent_scan__compressed_kv_cla__moe_arch_mod__decode"

XN_OFF   = 0x0
QABS_OFF = 0x10000
FFN_OFF  = 0x40000
OPART_OFF= 0x200000
SPART_OFF= 0x600000
YPART_OFF= 0x800000
ML_OFF   = 0xA00000
WS_SIZE  = 0x1000000

class G:
    def __init__(self):
        self.L = []
    def __call__(self, s):
        for line in s.strip("\n").split("\n"):
            self.L.append("    " + line.strip() if not line.strip().endswith(":") else line.strip())
    def raw(self, s):
        self.L.append(s)

def srd(g, d, base, size):
    g(f"s_mov_b32 s{d}, s{base}")
    g(f"s_and_b32 s{d+1}, s{base+1}, 0xffff")
    g(f"s_mov_b32 s{d+2}, 0x{size:x}")
    g(f"s_mov_b32 s{d+3}, 0x00020000")

def dpp_reduce(g, op, v, sdst):
    for sh in (1, 2, 4, 8):
        g("s_nop 1")
        g(f"{op}_dpp v{v}, v{v}, v{v} row_shr:{sh} row_mask:0xf bank_mask:0xf")
    g("s_nop 1")
    g(f"{op}_dpp v{v}, v{v}, v{v} row_bcast:15 row_mask:0xa bank_mask:0xf")
    g("s_nop 1")
    g(f"{op}_dpp v{v}, v{v}, v{v} row_bcast:31 row_mask:0xc bank_mask:0xf")
    g("s_nop 1")
    g(f"v_readlane_b32 s{sdst}, v{v}, 63")
    g("s_nop 3")

def rb(g, v, tmp):
    g(f"v_cvt_pk_bf16_f32 v{tmp}, v{v}, v{v}")
    g(f"v_lshlrev_b32 v{v}, 16, v{tmp}")

STAMP_OFF = 0xC00000
DEBUG = False
def stamp(g, i):
    if DEBUG:
        g(f"s_memrealtime s[{84+2*i}:{85+2*i}]")
def stamps_flush(g, n, kidx, srdws, lbl):
    if not DEBUG:
        return
    g("s_waitcnt lgkmcnt(0)")
    g("s_cmp_lg_u32 s3, 0")
    g(f"s_cbranch_scc1 {lbl}")
    g("s_lshl_b32 s4, s2, 6")
    g(f"s_add_u32 s4, s4, {STAMP_OFF + kidx*0x10000}")
    g("s_mov_b64 exec, 1")
    g("v_mov_b32 v1, 0")
    for i in range(n):
        g(f"v_mov_b32 v2, s{84+2*i}")
        g(f"buffer_store_dword v2, v1, s[{srdws}:{srdws+3}], s4 offen offset:{4*i}")
    g(f"{lbl}:")

def kernel_header(g, name):
    g.raw(f".globl {name}")
    g.raw(".p2align 8")
    g.raw(f".type {name},@function")
    g.raw(f"{name}:")

def kernel_desc(g, name, vgpr, sgpr, accum=None):
    if accum is None:
        accum = (vgpr + 3) // 4 * 4
    g.raw(".p2align 6")
    g.raw(f".amdhsa_kernel {name}")
    g.raw(f"  .amdhsa_next_free_vgpr {vgpr}")
    g.raw(f"  .amdhsa_next_free_sgpr {sgpr}")
    g.raw(f"  .amdhsa_accum_offset {accum}")
    g.raw("  .amdhsa_group_segment_fixed_size 0")
    g.raw("  .amdhsa_kernarg_size 112")
    g.raw("  .amdhsa_user_sgpr_count 2")
    g.raw("  .amdhsa_user_sgpr_kernarg_segment_ptr 1")
    g.raw("  .amdhsa_system_sgpr_workgroup_id_x 1")
    g.raw("  .amdhsa_float_denorm_mode_32 3")
    g.raw(".end_amdhsa_kernel")

def load_kernargs(g):
    g("s_load_dwordx16 s[16:31], s[0:1], 0")
    g("s_load_dwordx8 s[32:39], s[0:1], 64")
    g("s_load_dwordx4 s[40:43], s[0:1], 96")

K1_WQ, K1_FF, K1_XN, K1_QX = 0, 131072, 147456, 151552
K1_LDS = 152576

def layernorm_row(g, vx, vt, s0):
    f = [vt + i for i in range(8)]
    T = vt + 8
    for i in range(4):
        g(f"v_lshlrev_b32 v{f[2*i]}, 16, v{vx+i}")
        g(f"v_and_b32 v{f[2*i+1]}, 0xffff0000, v{vx+i}")
    g(f"v_add_f32 v{T}, v{f[0]}, v{f[1]}")
    for i in range(2, 8):
        g(f"v_add_f32 v{T}, v{T}, v{f[i]}")
    dpp_reduce(g, "v_add_f32", T, s0)
    g(f"v_mov_b32 v{T+1}, s{s0}")
    g(f"v_mul_f32 v{T+1}, 0x3b000000, v{T+1}")
    g(f"v_sub_f32 v{T+2}, v{f[0]}, v{T+1}")
    g(f"v_mul_f32 v{T}, v{T+2}, v{T+2}")
    for i in range(1, 8):
        g(f"v_sub_f32 v{T+2}, v{f[i]}, v{T+1}")
        g(f"v_fmac_f32 v{T}, v{T+2}, v{T+2}")
    dpp_reduce(g, "v_add_f32", T, s0)
    g(f"v_mov_b32 v{T+2}, s{s0}")
    g(f"v_mul_f32 v{T+2}, 0x3b000000, v{T+2}")
    rb(g, T + 1, T + 3)
    rb(g, T + 2, T + 3)
    g(f"v_add_f32 v{T+2}, 0x3727c5ac, v{T+2}")
    rb(g, T + 2, T + 3)
    g(f"v_sqrt_f32 v{T+2}, v{T+2}")
    g("s_nop 0")
    rb(g, T + 2, T + 3)
    g(f"v_rcp_f32 v{T+3}, v{T+2}")
    g("s_nop 0")
    for i in range(8):
        g(f"v_sub_f32 v{f[i]}, v{f[i]}, v{T+1}")
        rb(g, f[i], T + 4)
        g(f"v_mul_f32 v{T+4}, v{f[i]}, v{T+3}")
        g(f"v_fma_f32 v{T+5}, -v{T+4}, v{T+2}, v{f[i]}")
        g(f"v_fma_f32 v{f[i]}, v{T+5}, v{T+3}, v{T+4}")
        rb(g, f[i], T + 4)

def gen_k1(g):
    name = "k1_kernel"
    kernel_header(g, name)
    g("s_cmp_ge_u32 s2, 256")
    g("s_cbranch_scc1 K1_done")
    stamp(g, 0)
    load_kernargs(g)
    g("v_lshrrev_b32 v1, 6, v0")
    g("v_and_b32 v0, 0x3ff, v0")
    g("v_readfirstlane_b32 s3, v1")
    g("v_and_b32 v1, 63, v0")
    g("v_lshrrev_b32 v2, 4, v1")
    g("v_and_b32 v3, 15, v1")
    g("s_and_b32 s68, s2, 7")
    g("s_lshl_b32 s68, s68, 2")
    g("s_lshr_b32 s4, s2, 3")
    g("s_and_b32 s4, s4, 3")
    g("s_add_u32 s68, s68, s4")
    if os.environ.get("HMODE") == "0":
        g("s_mov_b32 s68, 0")
    if os.environ.get("HMODE") == "x":
        g("s_lshr_b32 s68, s2, 3")
    g("s_lshr_b32 s69, s2, 5")
    g("s_mov_b32 s4, 0x12492493")
    g("s_mul_hi_u32 s71, s2, s4")
    g("s_mul_i32 s4, s71, 14")
    g("s_sub_u32 s70, s2, s4")
    g("s_waitcnt lgkmcnt(0)")
    srd(g, 44, 20, 512 * 8192)
    srd(g, 48, 22, 512 * 8192)
    srd(g, 52, 16, 4096)
    srd(g, 56, 32, 512 * 3584)
    srd(g, 60, 34, 512 * 3584)
    srd(g, 64, 42, WS_SIZE)
    g("s_lshl_b32 s4, s3, 10")
    g("v_lshlrev_b32 v4, 4, v1")
    g("buffer_load_dwordx4 v[8:11], v4, s[52:55], s4 offen")
    g("s_and_b32 s5, s3, 1")
    g("s_lshl_b32 s5, s5, 3")
    g("v_lshlrev_b32 v5, 1, v2")
    g("v_add_u32 v5, s5, v5")
    g("v_xor_b32 v5, v5, v3")
    g("v_lshlrev_b32 v5, 4, v5")
    g("s_lshl_b32 s6, s68, 8")
    g("v_lshl_add_u32 v6, v2, 13, v5")
    g("v_add_u32 v6, s6, v6")
    g("s_lshl_b32 s7, s3, 15")
    g(f"s_lshl_b32 s8, s3, 10")
    if K1_WQ:
        g(f"s_add_u32 s8, s8, {K1_WQ}")
    for n in range(32):
        g("s_mov_b32 m0, s8")
        g("s_add_u32 s8, s8, 4096")
        g("buffer_load_dwordx4 v6, s[44:47], s7 offen lds")
        g("s_add_u32 s7, s7, 131072")
    g("s_lshl_b32 s7, s69, 6")
    g("s_lshl_b32 s8, s3, 4")
    g("s_add_u32 s7, s7, s8")
    g("v_add_u32 v7, s7, v3")
    g("v_lshlrev_b32 v7, 13, v7")
    g("v_lshl_add_u32 v7, v2, 4, v7")
    g("v_add_u32 v7, s6, v7")
    for ks in range(4):
        g(f"buffer_load_dwordx4 v[{64+4*ks}:{67+4*ks}], v7, s[48:51], 0 offen offset:{64*ks}")
    g("s_cmp_ge_u32 s2, 224")
    g("s_cbranch_scc1 K1_noffn1")
    g("s_mov_b32 s8, 3584")
    g("v_mul_lo_u32 v12, v2, s8")
    g("v_add_u32 v12, v12, v5")
    g("s_lshl_b32 s7, s70, 8")
    g("s_lshl_b32 s9, s71, 5")
    g("s_lshl_b32 s10, s3, 2")
    g("s_add_u32 s9, s9, s10")
    g("s_mul_i32 s9, s9, 3584")
    g("s_add_u32 s7, s7, s9")
    g(f"s_lshl_b32 s8, s3, 10")
    g(f"s_add_u32 s8, s8, {K1_FF}")
    for mat in range(2):
        for ii in range(2):
            g(f"s_add_u32 s10, s8, {mat*8192 + ii*4096}")
            g("s_mov_b32 m0, s10")
            g(f"s_add_u32 s9, s7, {ii*16*3584}")
            g(f"buffer_load_dwordx4 v12, s[{56+4*mat}:{59+4*mat}], s9 offen lds")
    g("K1_noffn1:")
    g("v_mov_b32 v16, -1\nv_mov_b32 v17, -1\nv_mov_b32 v18, -1\nv_mov_b32 v19, -1")
    g("v_lshlrev_b32 v13, 4, v0")
    g("s_lshl_b32 s7, s2, 15")
    g(f"s_add_u32 s7, s7, {OPART_OFF}")
    for n in range(8):
        if os.environ.get("NOCLEAR"):
            g("s_nop 0")
            continue
        g("buffer_store_dwordx4 v[16:19], v13, s[64:67], s7 offen")
        g("s_add_u32 s7, s7, 4096")
    g("s_lshl_b32 s7, s2, 7")
    g(f"s_add_u32 s7, s7, {ML_OFF}")
    g("v_cmp_gt_u32 vcc, 8, v0")
    g("s_and_saveexec_b64 s[10:11], vcc")
    g("s_cbranch_execz K1_noml")
    g("buffer_store_dwordx4 v[16:19], v13, s[64:67], s7 offen")
    g("K1_noml:")
    g("s_mov_b64 exec, s[10:11]")
    stamp(g, 1)
    g("s_waitcnt vmcnt(36)")
    stamp(g, 2)
    layernorm_row(g, 8, 20, 72)
    for i in range(4):
        g(f"v_cvt_pk_bf16_f32 v{36+i}, v{20+2*i}, v{21+2*i}")
    g("v_lshrrev_b32 v14, 2, v1")
    g("v_lshlrev_b32 v14, 6, v14")
    g("v_and_b32 v15, 1, v1")
    g("v_lshl_add_u32 v14, v15, 5, v14")
    g("v_bfe_u32 v15, v1, 1, 1")
    g("v_lshl_add_u32 v14, v15, 3, v14")
    g("s_lshl_b32 s4, s3, 10")
    g(f"s_add_u32 s4, s4, {K1_XN}")
    g("v_add_u32 v14, s4, v14")
    g("ds_write_b64 v14, v[36:37]")
    g("ds_write_b64 v14, v[38:39] offset:16")
    g("s_cmp_lg_u32 s2, 0")
    g("s_cbranch_scc1 K1_noxn")
    g("s_lshl_b32 s4, s3, 10")
    g("buffer_store_dwordx4 v[36:39], v4, s[64:67], s4 offen")
    g("K1_noxn:")
    g("v_lshrrev_b32 v40, 2, v3")
    g("v_and_b32 v41, 3, v3")
    g("v_and_b32 v42, 1, v2")
    g("v_lshl_add_u32 v42, v42, 2, v40")
    g("v_lshl_add_u32 v43, v2, 2, v40")
    g("v_lshlrev_b32 v43, 8, v43")
    g("v_lshl_add_u32 v43, v41, 3, v43")
    g("s_lshl_b32 s4, s3, 1")
    g("v_xor_b32 v44, s4, v42")
    g("v_lshl_add_u32 v44, v44, 5, v43")
    g("s_add_u32 s4, s4, 1")
    g("v_xor_b32 v45, s4, v42")
    g("v_lshl_add_u32 v45, v45, 5, v43")
    g("v_add_u32 v46, 0x10000, v44")
    g("v_add_u32 v47, 0x10000, v45")
    g("v_lshlrev_b32 v48, 10, v41")
    g("v_lshl_add_u32 v48, v2, 4, v48")
    g(f"v_add_u32 v48, {K1_XN}, v48")
    for i in range(8):
        g(f"v_mov_b32 v{80+i}, 0")
    stamp(g, 3)
    g("s_waitcnt vmcnt(0) lgkmcnt(0)")
    stamp(g, 4)
    g("s_barrier")
    def issue(grp):
        e = grp & 1
        for kk in range(2):
            s = grp * 2 + kk
            base = 96 + e * 24 + kk * 12
            g(f"ds_read_b128 v[{base}:{base+3}], v48 offset:{s*64}")
            for d in range(2):
                for half in range(2):
                    off = K1_WQ + s * 8192 + half * 4096
                    reg = (44 + d) if off < 65536 else (46 + d)
                    off2 = off if off < 65536 else off - 65536
                    rr = base + 4 + d * 4 + half * 2
                    g(f"ds_read_b64_tr_b16 v[{rr}:{rr+1}], v{reg} offset:{off2}")
    def compute(grp):
        e = grp & 1
        for kk in range(2):
            base = 96 + e * 24 + kk * 12
            for d in range(2):
                g(f"v_mfma_f32_16x16x32_bf16 v[{80+4*d}:{83+4*d}], v[{base+4+4*d}:{base+7+4*d}], v[{base}:{base+3}], v[{80+4*d}:{83+4*d}]")
    issue(0)
    for grp in range(8):
        if grp < 7:
            issue(grp + 1)
            g("s_waitcnt lgkmcnt(10)")
        else:
            g("s_waitcnt lgkmcnt(0)")
        compute(grp)
    g("s_nop 15")
    g("v_lshlrev_b32 v49, 8, v41")
    g("v_lshl_add_u32 v49, v2, 3, v49")
    g("s_lshl_b32 s4, s3, 6")
    g(f"s_add_u32 s4, s4, {K1_QX}")
    g("v_add_u32 v49, s4, v49")
    for d in range(2):
        g(f"v_cvt_pk_bf16_f32 v{88+2*d}, v{80+4*d}, v{81+4*d}")
        g(f"v_cvt_pk_bf16_f32 v{89+2*d}, v{82+4*d}, v{83+4*d}")
    g("ds_write_b64 v49, v[88:89]")
    g("ds_write_b64 v49, v[90:91] offset:32")
    g("s_waitcnt lgkmcnt(0)")
    g("s_barrier")
    stamp(g, 5)
    g("v_lshlrev_b32 v50, 8, v41")
    g("v_lshl_add_u32 v50, v2, 4, v50")
    g(f"v_add_u32 v50, {K1_QX}, v50")
    for ks in range(4):
        g(f"ds_read_b128 v[{96+4*ks}:{99+4*ks}], v50 offset:{64*ks}")
    g("s_waitcnt lgkmcnt(0)")
    g("v_mfma_f32_16x16x32_bf16 v[80:83], v[64:67], v[96:99], 0")
    for ks in range(1, 4):
        g(f"v_mfma_f32_16x16x32_bf16 v[80:83], v[{64+4*ks}:{67+4*ks}], v[{96+4*ks}:{99+4*ks}], v[80:83]")
    g("v_lshlrev_b32 v51, 15, v41")
    g("v_lshl_add_u32 v51, v2, 3, v51")
    g("s_lshl_b32 s4, s68, 10")
    g("s_lshl_b32 s5, s69, 7")
    g("s_add_u32 s4, s4, s5")
    g("s_lshl_b32 s5, s3, 5")
    g("s_add_u32 s4, s4, s5")
    g(f"s_add_u32 s4, s4, {QABS_OFF}")
    g("s_nop 15")
    g("v_cvt_pk_bf16_f32 v88, v80, v81")
    g("v_cvt_pk_bf16_f32 v89, v82, v83")
    g("v_cmp_gt_u32 vcc, 4, v3")
    g("s_and_saveexec_b64 s[10:11], vcc")
    g("buffer_store_dwordx2 v[88:89], v51, s[64:67], s4 offen")
    g("s_mov_b64 exec, s[10:11]")
    stamp(g, 6)
    g("s_cmp_ge_u32 s2, 224")
    g("s_cbranch_scc1 K1_fin")
    g("s_lshl_b32 s4, s71, 6")
    g("v_add_u32 v52, s4, v48")
    g("ds_read_b128 v[96:99], v52")
    for mat in range(2):
        for d in range(2):
            for half in range(2):
                rr = 100 + (mat * 2 + d) * 4 + half * 2
                off = K1_FF + mat * 8192 + half * 4096 - 65536 * 2
                g(f"v_add_u32 v53, 0x10000, v{46+d}")
                g(f"ds_read_b64_tr_b16 v[{rr}:{rr+1}], v53 offset:{off}")
    g("s_waitcnt lgkmcnt(0)")
    for mat in range(2):
        for d in range(2):
            q = mat * 2 + d
            g(f"v_mfma_f32_16x16x32_bf16 v[{120+4*q}:{123+4*q}], v[{100+4*q}:{103+4*q}], v[96:99], 0")
    g("s_mov_b32 s4, 7168")
    g("v_mul_lo_u32 v54, v41, s4")
    g("v_lshl_add_u32 v54, v2, 4, v54")
    g("s_mul_i32 s4, s71, 57344")
    g("s_lshl_b32 s5, s70, 9")
    g("s_add_u32 s4, s4, s5")
    g("s_lshl_b32 s5, s3, 7")
    g("s_add_u32 s4, s4, s5")
    g(f"s_add_u32 s4, s4, {FFN_OFF}")
    g("s_nop 15")
    g("v_cmp_gt_u32 vcc, 4, v3")
    g("s_and_saveexec_b64 s[10:11], vcc")
    for mat in range(2):
        g(f"s_add_u32 s5, s4, {mat*28672}")
        for d in range(2):
            q = mat * 2 + d
            g(f"buffer_store_dwordx4 v[{120+4*q}:{123+4*q}], v54, s[64:67], s5 offen offset:{64*d}")
    g("s_mov_b64 exec, s[10:11]")
    g("K1_fin:")
    if DEBUG:
        g("s_waitcnt vmcnt(0)")
    stamp(g, 7)
    stamps_flush(g, 8, 0, 64, "K1_sf")
    g("K1_done:")
    g("s_endpgm")
    return name


RS = 1056
K2_CKV, K2_QA, K2_P, K2_MX, K2_LS = 0, 135168, 151552, 155648, 156672
K2_LDS = 157696

def common_prologue(g, done_lbl):
    g("s_cmp_ge_u32 s2, 256")
    g(f"s_cbranch_scc1 {done_lbl}")
    stamp(g, 0)
    load_kernargs(g)
    g("v_lshrrev_b32 v1, 6, v0")
    g("v_and_b32 v0, 0x3ff, v0")
    g("v_readfirstlane_b32 s3, v1")
    g("v_and_b32 v1, 63, v0")
    g("v_lshrrev_b32 v2, 4, v1")
    g("v_and_b32 v3, 15, v1")
    g("v_lshrrev_b32 v40, 2, v3")
    g("v_and_b32 v41, 3, v3")

def gen_k2(g):
    name = "k2_kernel"
    kernel_header(g, name)
    common_prologue(g, "K2_done")
    g("s_lshr_b32 s68, s2, 3")
    g("s_and_b32 s68, s68, 1")
    g("s_and_b32 s4, s2, 7")
    g("s_lshr_b32 s5, s2, 4")
    g("s_lshl_b32 s5, s5, 3")
    g("s_or_b32 s4, s4, s5")
    g("s_lshr_b32 s69, s4, 5")
    g("s_and_b32 s70, s4, 31")
    g("s_waitcnt lgkmcnt(0)")
    srd(g, 44, 18, 16 << 20)
    srd(g, 64, 42, WS_SIZE)
    g("v_lshlrev_b32 v4, 4, v1")
    g("s_lshl_b32 s5, s69, 5")
    g("s_lshl_b32 s6, s68, 4")
    g("s_add_u32 s5, s5, s6")
    g("s_lshl_b32 s6, s3, 2")
    for i in range(4):
        g(f"s_add_u32 s7, s6, {i}")
        g("v_xor_b32 v5, s7, v1")
        g("v_lshlrev_b32 v5, 4, v5")
        g("s_add_u32 s8, s5, s7")
        g("s_lshl_b32 s8, s8, 10")
        g(f"s_add_u32 s8, s8, {QABS_OFF}")
        g("s_lshl_b32 s9, s7, 10")
        g(f"s_add_u32 s9, s9, {K2_QA}")
        g("s_mov_b32 m0, s9")
        g("s_nop 0")
        g("buffer_load_dwordx4 v5, s[64:67], s8 offen lds")
    g("s_lshl_b32 s7, s69, 22")
    g("s_lshl_b32 s8, s70, 17")
    g("s_add_u32 s7, s7, s8")
    g("s_lshl_b32 s8, s3, 15")
    g("s_add_u32 s7, s7, s8")
    g(f"s_mul_i32 s8, s3, {32*RS}")
    if K2_CKV:
        g(f"s_add_u32 s8, s8, {K2_CKV}")
    for n in range(32):
        g("s_mov_b32 m0, s8")
        g(f"s_add_u32 s8, s8, {RS}")
        g("buffer_load_dwordx4 v4, s[44:47], s7 offen lds")
        g("s_add_u32 s7, s7, 1024")
    stamp(g, 1)
    for i in range(4):
        g(f"v_add_u32 v6, {4*i}, v2")
        g("v_xor_b32 v6, v6, v3")
        g("v_lshlrev_b32 v6, 4, v6")
        g(f"v_lshl_add_u32 v{8+i}, v3, 10, v6")
        g(f"v_add_u32 v{8+i}, {K2_QA}, v{8+i}")
    g("s_waitcnt vmcnt(32)")
    g("s_barrier")
    stamp(g, 2)
    for s_ in range(16):
        g(f"ds_read_b128 v[{64+4*s_}:{67+4*s_}], v{8+(s_&3)} offset:{(s_>>2)*256}")
    g("s_lshl_b32 s4, s3, 5")
    g("v_add_u32 v12, s4, v3")
    g(f"s_mov_b32 s4, {RS}")
    g("v_mul_lo_u32 v12, v12, s4")
    g("v_lshl_add_u32 v12, v2, 4, v12")
    if K2_CKV:
        g(f"v_add_u32 v12, {K2_CKV}, v12")
    for i in range(8):
        g(f"v_mov_b32 v{48+i}, 0")
    g("s_waitcnt vmcnt(0)")
    stamp(g, 3)
    def issue(grp):
        e = grp & 1
        for kk in range(4):
            s_ = grp * 4 + kk
            for T in range(2):
                rr = 128 + e * 32 + (kk * 2 + T) * 4
                g(f"ds_read_b128 v[{rr}:{rr+3}], v12 offset:{T*16*RS + s_*64}")
    def compute(grp):
        e = grp & 1
        for kk in range(4):
            s_ = grp * 4 + kk
            for T in range(2):
                rr = 128 + e * 32 + (kk * 2 + T) * 4
                g(f"v_mfma_f32_16x16x32_bf16 v[{48+4*T}:{51+4*T}], v[{rr}:{rr+3}], v[{64+4*s_}:{67+4*s_}], v[{48+4*T}:{51+4*T}]")
    issue(0)
    for grp in range(4):
        if grp < 3:
            issue(grp + 1)
            g("s_waitcnt lgkmcnt(8)")
        else:
            g("s_waitcnt lgkmcnt(0)")
        compute(grp)
    g("s_nop 15")
    for i in range(8):
        rb(g, 48 + i, 56)
        g(f"v_mul_f32 v{48+i}, 0x3db504f3, v{48+i}")
        rb(g, 48 + i, 56)
    g("v_max_f32 v56, v48, v49")
    for i in range(2, 8):
        g(f"v_max_f32 v56, v56, v{48+i}")
    g("v_lshlrev_b32 v13, 6, v3")
    g("v_lshl_add_u32 v14, v2, 2, v13")
    g("s_lshl_b32 s4, s3, 4")
    g("v_add_u32 v14, s4, v14")
    g(f"ds_write_b32 v14, v56 offset:{K2_MX - 131072}" if False else f"v_add_u32 v15, {K2_MX}, v14")
    g("ds_write_b32 v15, v56")
    g(f"v_add_u32 v16, {K2_MX}, v13")
    g("s_waitcnt lgkmcnt(0)")
    g("s_barrier")
    for i in range(4):
        g(f"ds_read_b128 v[{128+4*i}:{131+4*i}], v16 offset:{16*i}")
    g("s_waitcnt lgkmcnt(0)")
    g("v_max_f32 v57, v128, v129")
    for i in range(2, 16):
        g(f"v_max_f32 v57, v57, v{128+i}")
    g("v_mov_b32 v58, 0")
    for i in range(8):
        g(f"v_sub_f32 v{48+i}, v{48+i}, v57")
        g(f"v_mul_f32 v{48+i}, 0x3fb8aa3b, v{48+i}")
        g(f"v_exp_f32 v{48+i}, v{48+i}")
    g("s_nop 0")
    for i in range(8):
        g(f"v_add_f32 v58, v58, v{48+i}")
    for i in range(4):
        g(f"v_cvt_pk_bf16_f32 v{60+i}, v{48+2*i}, v{49+2*i}")
    g(f"v_add_u32 v15, {K2_LS}, v14")
    g("ds_write_b32 v15, v58")
    g("s_lshl_b32 s4, s3, 10")
    g(f"s_add_u32 s4, s4, {K2_P}")
    g("v_add_u32 v17, s4, v4")
    g("ds_write_b128 v17, v[60:63]")
    g(f"v_add_u32 v17, {K2_P}, v4")
    g("v_lshl_add_u32 v18, v2, 2, v40")
    g(f"s_mov_b32 s4, {RS}")
    g("v_mul_lo_u32 v18, v18, s4")
    g("v_lshl_add_u32 v18, v41, 3, v18")
    g("s_lshl_b32 s4, s3, 8")
    g("v_add_u32 v18, s4, v18")
    if K2_CKV:
        g(f"v_add_u32 v18, {K2_CKV}, v18")
    g(f"v_add_u32 v19, {64*RS}, v18")
    g("s_waitcnt lgkmcnt(0)")
    g("s_barrier")
    stamp(g, 4)
    for u in range(4):
        g(f"ds_read_b128 v[{64+4*u}:{67+4*u}], v17 offset:{u*1024}")
    g(f"v_add_u32 v16, {K2_LS}, v13")
    for i in range(4):
        g(f"ds_read_b128 v[{80+4*i}:{83+4*i}], v16 offset:{16*i}")
    def pissue(ct):
        e = ct & 1
        for u in range(4):
            for half in range(2):
                rr = 128 + e * 16 + u * 4 + half * 2
                off = (32 * (u & 1) + 16 * half) * RS + ct * 32
                g(f"ds_read_b64_tr_b16 v[{rr}:{rr+1}], v{18 + (u>>1)} offset:{off}")
    def pcompute(ct):
        e = ct & 1
        for u in range(4):
            rr = 128 + e * 16 + u * 4
            c = "0" if u == 0 else f"v[{192+4*ct}:{195+4*ct}]"
            g(f"v_mfma_f32_16x16x32_bf16 v[{192+4*ct}:{195+4*ct}], v[{rr}:{rr+3}], v[{64+4*u}:{67+4*u}], {c}")
    pissue(0)
    for ct in range(8):
        if ct < 7:
            pissue(ct + 1)
            g("s_waitcnt lgkmcnt(8)")
        else:
            g("s_waitcnt lgkmcnt(0)")
        pcompute(ct)
    stamp(g, 5)
    g("v_add_f32 v59, v80, v81")
    for i in range(2, 16):
        g(f"v_add_f32 v59, v59, v{80+i}")
    g("v_mov_b32 v58, v57")
    g("v_lshlrev_b32 v20, 17, v3")
    g("v_lshl_add_u32 v20, v2, 3, v20")
    g("s_lshl_b32 s4, s68, 21")
    g("s_lshl_b32 s5, s3, 15")
    g("s_add_u32 s4, s4, s5")
    g("s_lshl_b32 s5, s69, 12")
    g("s_add_u32 s4, s4, s5")
    g("s_lshl_b32 s5, s70, 7")
    g("s_add_u32 s4, s4, s5")
    g(f"s_add_u32 s4, s4, {OPART_OFF}")
    g("s_add_u32 s5, s4, 16384")
    g("s_nop 7")
    for ct in range(8):
        g(f"v_cvt_pk_bf16_f32 v{128+2*ct}, v{192+4*ct}, v{193+4*ct}")
        g(f"v_cvt_pk_bf16_f32 v{129+2*ct}, v{194+4*ct}, v{195+4*ct}")
        g(f"buffer_store_dwordx2 v[{128+2*ct}:{129+2*ct}], v20, s[64:67], s{4+(ct>>2)} offen offset:{(ct&3)*32}{SC1}")
    g("s_cmp_lg_u32 s3, 0")
    g("s_cbranch_scc1 K2_fin")
    g("v_lshlrev_b32 v21, 10, v3")
    g("s_lshl_b32 s4, s68, 14")
    g("s_lshl_b32 s5, s69, 8")
    g("s_add_u32 s4, s4, s5")
    g("s_lshl_b32 s5, s70, 3")
    g("s_add_u32 s4, s4, s5")
    g(f"s_add_u32 s4, s4, {ML_OFF}")
    g("s_mov_b64 s[10:11], exec")
    g("s_mov_b64 exec, 0xffff")
    g(f"buffer_store_dwordx2 v[58:59], v21, s[64:67], s4 offen{SC1}")
    g("s_mov_b64 exec, s[10:11]")
    g("K2_fin:")
    if DEBUG:
        g("s_waitcnt vmcnt(0)")
    stamp(g, 6)
    stamps_flush(g, 7, 1, 64, "K2_sf")
    g("K2_done:")
    g("s_endpgm")
    return name

SC1 = ""

K3_WO, K3_WUV, K3_WD, K3_OL, K3_HB, K3_HF = 0, 135168, 151552, 160000, 160512, 161536
K3_LDS = 161792

def gen_k3(g):
    name = "k3_kernel"
    kernel_header(g, name)
    common_prologue(g, "K3_done")
    g("s_and_b32 s68, s2, 7")
    g("s_lshl_b32 s68, s68, 2")
    g("s_lshr_b32 s4, s2, 3")
    g("s_and_b32 s4, s4, 3")
    g("s_add_u32 s68, s68, s4")
    g("s_lshr_b32 s69, s2, 5")
    g("s_waitcnt lgkmcnt(0)")
    srd(g, 44, 24, 512 * 8192)
    srd(g, 48, 26, 32 * 131072)
    srd(g, 52, 36, 1792 * 1024)
    srd(g, 64, 42, WS_SIZE)
    g("v_lshlrev_b32 v4, 4, v1")
    g("v_and_b32 v5, 31, v1")
    g("v_lshlrev_b32 v5, 3, v5")
    g("s_lshl_b32 s4, s68, 10")
    g("s_lshl_b32 s5, s3, 8")
    g("s_add_u32 s4, s4, s5")
    g(f"s_add_u32 s4, s4, {ML_OFF}")
    g(f"buffer_load_dwordx2 v[8:9], v5, s[64:67], s4 offen{SC1}")
    g("v_lshlrev_b32 v6, 1, v1")
    g("s_lshl_b32 s4, s68, 17")
    g("s_lshl_b32 s5, s69, 14")
    g("s_add_u32 s4, s4, s5")
    g("s_lshl_b32 s5, s3, 12")
    g("s_add_u32 s4, s4, s5")
    g(f"s_add_u32 s4, s4, {OPART_OFF}")
    for kc in range(32):
        g(f"buffer_load_ushort v{64+kc}, v6, s[64:67], s4 offen offset:{kc*128}{SC1}")
    g("s_cmp_ge_u32 s2, 224")
    g("s_cbranch_scc1 K3_nf1")
    g("v_and_b32 v7, 7, v1")
    g("v_lshlrev_b32 v7, 2, v7")
    g("v_lshrrev_b32 v10, 3, v1")
    g("s_mov_b32 s4, 7168")
    g("v_mul_lo_u32 v10, v10, s4")
    g("v_add_u32 v7, v7, v10")
    g("s_mul_i32 s4, s3, 229376")
    g("s_lshl_b32 s5, s2, 5")
    g("s_add_u32 s4, s4, s5")
    g(f"s_add_u32 s4, s4, {FFN_OFF}")
    for i in range(4):
        g(f"buffer_load_dword v{12+i}, v7, s[64:67], s4 offen")
        g("s_add_u32 s4, s4, 57344")
    g("s_lshl_b32 s4, s2, 3")
    g("s_lshl_b32 s5, s3, 1")
    g("s_add_u32 s4, s4, s5")
    g("s_lshl_b32 s4, s4, 10")
    g(f"s_mul_i32 s5, s3, {2*RS}")
    g(f"s_add_u32 s5, s5, {K3_WD}")
    for i in range(2):
        g("s_mov_b32 m0, s5")
        g(f"s_add_u32 s5, s5, {RS}")
        g("buffer_load_dwordx4 v4, s[52:55], s4 offen lds")
        g("s_add_u32 s4, s4, 1024")
    g("K3_nf1:")
    g("s_and_b32 s5, s3, 1")
    g("s_lshl_b32 s5, s5, 3")
    g("v_lshlrev_b32 v16, 1, v2")
    g("v_add_u32 v16, s5, v16")
    g("v_xor_b32 v16, v16, v3")
    g("v_lshlrev_b32 v16, 4, v16")
    g("v_lshl_add_u32 v16, v2, 13, v16")
    g("s_lshl_b32 s6, s68, 8")
    g("s_lshl_b32 s7, s69, 19")
    g("s_add_u32 s6, s6, s7")
    g("s_lshl_b32 s7, s3, 15")
    g("s_add_u32 s6, s6, s7")
    g("s_lshl_b32 s8, s3, 10")
    g(f"s_add_u32 s8, s8, {K3_WUV}")
    for n in range(4):
        g("s_mov_b32 m0, s8")
        g("s_add_u32 s8, s8, 4096")
        g("buffer_load_dwordx4 v16, s[44:47], s6 offen lds")
        g("s_add_u32 s6, s6, 131072")
    g("s_lshl_b32 s6, s68, 17")
    g("s_lshl_b32 s7, s3, 15")
    g("s_add_u32 s6, s6, s7")
    g(f"s_mul_i32 s8, s3, {32*RS}")
    if K3_WO:
        g(f"s_add_u32 s8, s8, {K3_WO}")
    for n in range(32):
        g("s_mov_b32 m0, s8")
        g(f"s_add_u32 s8, s8, {RS}")
        g("buffer_load_dwordx4 v4, s[48:51], s6 offen lds")
        g("s_add_u32 s6, s6, 1024")
    stamp(g, 1)
    g("s_waitcnt vmcnt(36)")
    stamp(g, 2)
    g("v_mov_b32 v17, v8")
    dpp_reduce(g, "v_max_f32", 17, 72)
    g("v_subrev_f32 v17, s72, v8")
    g("v_mul_f32 v17, 0x3fb8aa3b, v17")
    g("v_exp_f32 v17, v17")
    g("s_nop 0")
    g("v_mul_f32 v18, v17, v9")
    dpp_reduce(g, "v_add_f32", 18, 73)
    for kc in range(16):
        g(f"v_readlane_b32 s{4+kc}, v17, {kc}")
    g("v_mov_b32 v19, 0")
    g("s_nop 3")
    for kc in range(16):
        g(f"v_lshlrev_b32 v{64+kc}, 16, v{64+kc}")
        g(f"v_fmac_f32 v19, s{4+kc}, v{64+kc}")
    for kc in range(16, 32):
        g(f"v_readlane_b32 s{4+kc-16}, v17, {kc}")
    g("s_nop 3")
    for kc in range(16, 32):
        g(f"v_lshlrev_b32 v{64+kc}, 16, v{64+kc}")
        g(f"v_fmac_f32 v19, s{4+kc-16}, v{64+kc}")
    g("v_mov_b32 v20, s73")
    g("v_mul_f32 v20, 0.5, v20")
    g("v_rcp_f32 v20, v20")
    g("s_nop 0")
    g("v_mul_f32 v19, v19, v20")
    g("v_cvt_pk_bf16_f32 v19, v19, v19")
    g("v_and_b32 v21, 0x23, v1")
    g("v_bfe_u32 v22, v1, 2, 2")
    g("v_lshl_add_u32 v21, v22, 3, v21")
    g("v_bfe_u32 v22, v1, 4, 1")
    g("v_lshl_add_u32 v21, v22, 2, v21")
    g("v_lshlrev_b32 v21, 1, v21")
    g("s_lshl_b32 s4, s3, 7")
    g(f"s_add_u32 s4, s4, {K3_OL}")
    g("v_add_u32 v21, s4, v21")
    g("ds_write_b16 v21, v19")
    g("s_cmp_ge_u32 s2, 224")
    g("s_cbranch_scc1 K3_nf2")
    g("v_add_f32 v12, v12, v13")
    g("v_add_f32 v14, v14, v15")
    g("v_add_f32 v12, v12, v14")
    g("v_lshlrev_b32 v22, 2, v0")
    g(f"v_add_u32 v22, {K3_HB}, v22")
    g("ds_write_b32 v22, v12")
    g("K3_nf2:")
    g("s_waitcnt vmcnt(0) lgkmcnt(0)")
    stamp(g, 3)
    g("s_barrier")
    g("s_cmp_ge_u32 s2, 224")
    g("s_cbranch_scc1 K3_nf3")
    g("v_and_b32 v22, 31, v1")
    g("v_lshlrev_b32 v22, 2, v22")
    g(f"v_add_u32 v22, {K3_HB}, v22")
    for w in range(4):
        g(f"ds_read_b32 v{24+w}, v22 offset:{w*256}")
        g(f"ds_read_b32 v{28+w}, v22 offset:{w*256+128}")
    g("s_waitcnt lgkmcnt(0)")
    g("v_add_f32 v24, v24, v25\nv_add_f32 v26, v26, v27\nv_add_f32 v24, v24, v26")
    g("v_add_f32 v28, v28, v29\nv_add_f32 v30, v30, v31\nv_add_f32 v28, v28, v30")
    rb(g, 24, 25)
    rb(g, 28, 25)
    g("v_mul_f32 v25, 0xbfb8aa3b, v24")
    g("v_exp_f32 v25, v25")
    g("s_nop 0")
    g("v_add_f32 v25, 1.0, v25")
    g("v_rcp_f32 v25, v25")
    g("s_nop 0")
    g("v_mul_f32 v24, v24, v25")
    rb(g, 24, 25)
    g("v_mul_f32 v24, v24, v28")
    g("v_cvt_pk_bf16_f32 v24, v24, v24")
    g("v_and_b32 v22, 31, v1")
    g("v_lshlrev_b32 v22, 1, v22")
    g("s_lshl_b32 s4, s3, 6")
    g(f"s_add_u32 s4, s4, {K3_HF}")
    g("v_add_u32 v22, s4, v22")
    g("ds_write_b16 v22, v24")
    g("s_waitcnt lgkmcnt(0)")
    g("v_lshlrev_b32 v22, 4, v41")
    g("v_and_b32 v23, 1, v2")
    g("v_lshl_add_u32 v22, v23, 3, v22")
    g("v_add_u32 v22, s4, v22")
    g("ds_read_b64 v[32:33], v22")
    g("v_mov_b32 v34, 0\nv_mov_b32 v35, 0")
    g("s_waitcnt lgkmcnt(0)")
    g("v_cmp_gt_u32 vcc, 2, v2")
    g("s_nop 1")
    g("v_cndmask_b32 v32, 0, v32, vcc")
    g("v_cndmask_b32 v33, 0, v33, vcc")
    g("v_lshl_add_u32 v22, v23, 2, v40")
    g(f"s_mov_b32 s4, {RS}")
    g("v_mul_lo_u32 v22, v22, s4")
    g("v_lshl_add_u32 v22, v41, 3, v22")
    g("s_lshl_b32 s4, s3, 8")
    g(f"s_add_u32 s4, s4, {K3_WD}")
    g("v_add_u32 v22, s4, v22")
    for mt in range(8):
        g(f"ds_read_b64_tr_b16 v[{128+4*mt}:{129+4*mt}], v22 offset:{mt*32}")
    g("s_waitcnt lgkmcnt(0)")
    for mt in range(8):
        g(f"v_mov_b32 v{130+4*mt}, v{128+4*mt}")
        g(f"v_mov_b32 v{131+4*mt}, v{129+4*mt}")
    g("s_nop 1")
    for mt in range(8):
        g(f"v_mfma_f32_16x16x32_bf16 v[{160+4*mt}:{163+4*mt}], v[{128+4*mt}:{131+4*mt}], v[32:35], 0")
    g("v_lshlrev_b32 v36, 11, v41")
    g("v_lshl_add_u32 v36, v2, 4, v36")
    g("s_lshl_b32 s4, s2, 13")
    g("s_lshl_b32 s5, s3, 9")
    g("s_add_u32 s4, s4, s5")
    g(f"s_add_u32 s4, s4, {YPART_OFF}")
    g("s_nop 15")
    g("v_cmp_gt_u32 vcc, 4, v3")
    g("s_and_saveexec_b64 s[10:11], vcc")
    for mt in range(8):
        g(f"buffer_store_dwordx4 v[{160+4*mt}:{163+4*mt}], v36, s[64:67], s4 offen offset:{mt*64}{SC1}")
    g("s_mov_b64 exec, s[10:11]")
    g("K3_nf3:")
    g("v_lshlrev_b32 v22, 7, v41")
    g("v_lshl_add_u32 v22, v2, 4, v22")
    g(f"v_add_u32 v22, {K3_OL}, v22")
    g("ds_read_b128 v[44:47], v22")
    g("ds_read_b128 v[48:51], v22 offset:64")
    g("v_and_b32 v23, 1, v2")
    g("v_lshl_add_u32 v23, v23, 2, v40")
    g("v_lshl_add_u32 v24, v2, 2, v40")
    g("v_lshlrev_b32 v24, 8, v24")
    g("v_lshl_add_u32 v24, v41, 3, v24")
    g(f"v_add_u32 v24, {K3_WUV}, v24")
    for dt in range(8):
        g(f"v_xor_b32 v25, {dt}, v23")
        g("v_lshl_add_u32 v25, v25, 5, v24")
        for s_ in range(2):
            for half in range(2):
                rr = 64 + dt * 8 + s_ * 4 + half * 2
                g(f"ds_read_b64_tr_b16 v[{rr}:{rr+1}], v25 offset:{s_*8192 + half*4096}")
        if dt % 2 == 1 and dt < 7:
            g("s_waitcnt lgkmcnt(8)")
    g("s_waitcnt lgkmcnt(0)")
    for dt in range(8):
        g(f"v_mfma_f32_16x16x32_bf16 v[{128+4*dt}:{131+4*dt}], v[{64+8*dt}:{67+8*dt}], v[44:47], 0")
        g(f"v_mfma_f32_16x16x32_bf16 v[{128+4*dt}:{131+4*dt}], v[{68+8*dt}:{71+8*dt}], v[48:51], v[{128+4*dt}:{131+4*dt}]")
    g("s_nop 15")
    for dt in range(8):
        g(f"v_cvt_pk_bf16_f32 v{44+2*dt}, v{128+4*dt}, v{129+4*dt}")
        g(f"v_cvt_pk_bf16_f32 v{45+2*dt}, v{130+4*dt}, v{131+4*dt}")
    stamp(g, 4)
    g("v_lshl_add_u32 v26, v2, 2, v40")
    g(f"s_mov_b32 s4, {RS}")
    g("v_mul_lo_u32 v26, v26, s4")
    g("v_lshl_add_u32 v26, v41, 3, v26")
    g("s_lshl_b32 s4, s3, 8")
    g("v_add_u32 v26, s4, v26")
    if K3_WO:
        g(f"v_add_u32 v26, {K3_WO}, v26")
    g(f"v_add_u32 v27, {64*RS}, v26")
    def pissue(mt):
        e = mt & 1
        for u in range(4):
            for half in range(2):
                rr = 64 + e * 16 + u * 4 + half * 2
                off = (32 * (u & 1) + 16 * half) * RS + mt * 32
                g(f"ds_read_b64_tr_b16 v[{rr}:{rr+1}], v{26 + (u>>1)} offset:{off}")
    def pcompute(mt):
        e = mt & 1
        for u in range(4):
            rr = 64 + e * 16 + u * 4
            c = "0" if u == 0 else f"v[{192+4*mt}:{195+4*mt}]"
            g(f"v_mfma_f32_16x16x32_bf16 v[{192+4*mt}:{195+4*mt}], v[{rr}:{rr+3}], v[{44+4*u}:{47+4*u}], {c}")
    pissue(0)
    for mt in range(8):
        if mt < 7:
            pissue(mt + 1)
            g("s_waitcnt lgkmcnt(8)")
        else:
            g("s_waitcnt lgkmcnt(0)")
        pcompute(mt)
    g("v_lshlrev_b32 v36, 11, v41")
    g("v_lshl_add_u32 v36, v2, 4, v36")
    g("s_lshl_b32 s4, s2, 13")
    g("s_lshl_b32 s5, s3, 9")
    g("s_add_u32 s4, s4, s5")
    g(f"s_add_u32 s4, s4, {SPART_OFF}")
    g("s_nop 15")
    g("v_cmp_gt_u32 vcc, 4, v3")
    g("s_and_saveexec_b64 s[10:11], vcc")
    for mt in range(8):
        g(f"buffer_store_dwordx4 v[{192+4*mt}:{195+4*mt}], v36, s[64:67], s4 offen offset:{mt*64}{SC1}")
    g("s_mov_b64 exec, s[10:11]")
    if DEBUG:
        g("s_waitcnt vmcnt(0)")
    stamp(g, 5)
    stamps_flush(g, 6, 2, 64, "K3_sf")
    g("K3_done:")
    g("s_endpgm")
    return name

K4_LDS = 2048
def gen_k4(g):
    name = "k4_kernel"
    kernel_header(g, name)
    common_prologue(g, "K4_done")
    g("s_lshr_b32 s68, s2, 6")
    g("s_and_b32 s69, s2, 63")
    g("s_waitcnt lgkmcnt(0)")
    srd(g, 44, 16, 4096)
    srd(g, 48, 30, 1024)
    srd(g, 52, 38, 4096)
    srd(g, 64, 42, WS_SIZE)
    g("v_and_b32 v4, 7, v1")
    g("v_lshlrev_b32 v4, 2, v4")
    g("v_lshrrev_b32 v5, 3, v1")
    g("v_lshl_add_u32 v4, v5, 13, v4")
    g("s_lshl_b32 s4, s3, 19")
    g("s_lshl_b32 s5, s68, 11")
    g("s_add_u32 s4, s4, s5")
    g("s_lshl_b32 s5, s69, 5")
    g("s_add_u32 s4, s4, s5")
    g(f"s_add_u32 s5, s4, {SPART_OFF}")
    g(f"s_add_u32 s6, s4, {YPART_OFF}")
    for i in range(8):
        g(f"buffer_load_dword v{16+i}, v4, s[64:67], s5 offen{SC1}")
        g("s_add_u32 s5, s5, 65536")
    for i in range(8):
        if i == 4:
            g("s_cmp_eq_u32 s3, 3")
            g("s_cbranch_scc1 K4_y4")
        g(f"buffer_load_dword v{24+i}, v4, s[64:67], s6 offen{SC1}")
        g("s_add_u32 s6, s6, 65536")
    g("s_branch K4_y8")
    g("K4_y4:")
    for i in range(4, 8):
        g(f"v_mov_b32 v{24+i}, 0")
    g("K4_y8:")
    g("v_lshlrev_b32 v6, 4, v1")
    g("s_lshl_b32 s4, s68, 10")
    g(f"buffer_load_dwordx4 v[32:35], v6, s[64:67], s4 offen")
    g("buffer_load_dwordx4 v[36:39], v6, s[48:51], 0 offen")
    g("v_and_b32 v7, 7, v1")
    g("v_lshlrev_b32 v7, 1, v7")
    g("s_lshl_b32 s5, s69, 4")
    g("s_add_u32 s5, s5, s4")
    g("buffer_load_ushort v44, v7, s[44:47], s5 offen")
    g("buffer_load_ushort v45, v7, s[64:67], s5 offen")
    g("s_waitcnt vmcnt(0)")
    stamp(g, 1)
    g("v_mov_b32 v8, 0")
    for i in range(4):
        g(f"v_lshlrev_b32 v9, 16, v{32+i}")
        g(f"v_lshlrev_b32 v10, 16, v{36+i}")
        g("v_fmac_f32 v8, v9, v10")
        g(f"v_and_b32 v9, 0xffff0000, v{32+i}")
        g(f"v_and_b32 v10, 0xffff0000, v{36+i}")
        g("v_fmac_f32 v8, v9, v10")
    dpp_reduce(g, "v_add_f32", 8, 72)
    for i in range(1, 8):
        g(f"v_add_f32 v16, v16, v{16+i}")
        g(f"v_add_f32 v24, v24, v{24+i}")
    g("v_lshlrev_b32 v11, 2, v0")
    g("ds_write_b32 v11, v16")
    g("ds_write_b32 v11, v24 offset:1024")
    g("s_waitcnt lgkmcnt(0)")
    g("s_barrier")
    g("s_cmp_lg_u32 s3, 0")
    g("s_cbranch_scc1 K4_done")
    g("v_and_b32 v11, 7, v1")
    g("v_lshlrev_b32 v11, 2, v11")
    for i in range(32):
        g(f"ds_read_b32 v{64+i}, v11 offset:{i*32}")
        g(f"ds_read_b32 v{96+i}, v11 offset:{1024+i*32}")
        if i % 4 == 3:
            g("s_waitcnt lgkmcnt(8)")
    g("s_waitcnt lgkmcnt(0)")
    for i in range(1, 32):
        g(f"v_add_f32 v64, v64, v{64+i}")
        g(f"v_add_f32 v96, v96, v{96+i}")
    rb(g, 64, 12)
    rb(g, 96, 12)
    g("v_mov_b32 v13, s72")
    rb(g, 13, 12)
    g("v_mul_f32 v13, 0xbfb8aa3b, v13")
    g("v_exp_f32 v13, v13")
    g("s_nop 0")
    g("v_add_f32 v13, 1.0, v13")
    g("v_rcp_f32 v13, v13")
    g("s_nop 0")
    rb(g, 13, 12)
    g("v_mul_f32 v96, v96, v13")
    rb(g, 96, 12)
    g("v_lshlrev_b32 v45, 16, v45")
    g("v_lshlrev_b32 v44, 16, v44")
    g("v_add_f32 v96, v45, v96")
    rb(g, 96, 12)
    g("v_mul_f32 v14, 0xbfb8aa3b, v96")
    g("v_exp_f32 v14, v14")
    g("s_nop 0")
    g("v_add_f32 v14, 1.0, v14")
    g("v_rcp_f32 v14, v14")
    g("s_nop 0")
    g("v_mul_f32 v96, v96, v14")
    rb(g, 96, 12)
    g("v_mul_f32 v64, v64, v96")
    rb(g, 64, 12)
    g("v_add_f32 v64, v44, v64")
    g("v_cvt_pk_bf16_f32 v64, v64, v64")
    g("s_mov_b64 exec, 0xff")
    g("buffer_store_short v64, v7, s[52:55], s5 offen")
    g("K4_done:")
    g("s_endpgm")
    return name

def main(out):
    g = G()
    launches = [("k1_kernel", 256, 256, K1_LDS), ("k2_kernel", 256, 256, K2_LDS),
                ("k3_kernel", 256, 256, K3_LDS), ("k4_kernel", 256, 256, K4_LDS)]
    hdr = []
    for (k, gx, bx, lds) in launches:
        hdr.append(f"; @launch kernel={k} grid=({gx},1,1) block=({bx},1,1) lds={lds}")
    g.L = hdr + ['.amdgcn_target "amdgcn-amd-amdhsa--gfx950"', ".text"]
    gen_k1(g)
    gen_k2(g)
    gen_k3(g)
    gen_k4(g)
    g.raw('.section .rodata,"a"')
    kernel_desc(g, "k1_kernel", 144, 102)
    kernel_desc(g, "k2_kernel", 224, 102)
    kernel_desc(g, "k3_kernel", 224, 102)
    kernel_desc(g, "k4_kernel", 128, 102)
    open(out, "w").write("\n".join(g.L) + "\n")

if __name__ == "__main__":
    if len(sys.argv) > 2 and sys.argv[2] == "debug":
        DEBUG = True
    main(sys.argv[1])
```

```python
import sys, os
NAME = "recurrent_scan__compressed_kv_cla__moe_arch_mod__decode"

XN_OFF   = 0x0
QP_OFF   = 0x140000
QABS_OFF = 0x10000
FFN_OFF  = 0x40000
OPART_OFF= 0x200000
SPART_OFF= 0x600000
YPART_OFF= 0x800000
ML_OFF   = 0xA00000
FLC_OFF  = 0xA10000
STAMP_OFF= 0xC00000
WS_SIZE  = 0x1000000
DEBUG = False
SPIN_MAX = 200000

RS = 1056
R0, S1, XR, S2 = 0, 135168, 151552, 155648
LDS_TOTAL = 163840
L_WQ, L_FF, L_XN, L_QX = R0, S1, XR, S2
L_CKV, L_QA, L_P, L_MX, L_LS = R0, S1, S2, S2 + 4096, S2 + 5120
L_WO, L_WUV, L_WD, L_OL, L_HB, L_HF, L_FIN = R0, S1, S2, XR, XR + 512, XR + 1536, XR + 2048

class G:
    def __init__(self):
        self.L = []
    def __call__(self, s):
        for line in s.strip("\n").split("\n"):
            self.L.append("    " + line.strip() if not line.strip().endswith(":") else line.strip())
    def raw(self, s):
        self.L.append(s)

def srd(g, d, base, size):
    g(f"s_mov_b32 s{d}, s{base}")
    g(f"s_and_b32 s{d+1}, s{base+1}, 0xffff")
    g(f"s_mov_b32 s{d+2}, 0x{size:x}")
    g(f"s_mov_b32 s{d+3}, 0x00020000")

def dpp_reduce(g, op, v, sdst):
    for sh in (1, 2, 4, 8):
        g("s_nop 1")
        g(f"{op}_dpp v{v}, v{v}, v{v} row_shr:{sh} row_mask:0xf bank_mask:0xf")
    g("s_nop 1")
    g(f"{op}_dpp v{v}, v{v}, v{v} row_bcast:15 row_mask:0xa bank_mask:0xf")
    g("s_nop 1")
    g(f"{op}_dpp v{v}, v{v}, v{v} row_bcast:31 row_mask:0xc bank_mask:0xf")
    g("s_nop 1")
    g(f"v_readlane_b32 s{sdst}, v{v}, 63")
    g("s_nop 3")

def rb(g, v, tmp):
    g(f"v_cvt_pk_bf16_f32 v{tmp}, v{v}, v{v}")
    g(f"v_lshlrev_b32 v{v}, 16, v{tmp}")

NSTAMP = 32
def stamp(g, i):
    if DEBUG:
        g("s_memrealtime s[84:85]")
        g("s_waitcnt lgkmcnt(0)")
        g(f"v_writelane_b32 v247, s84, {i}")
def stamp_flush(g, off):
    if DEBUG:
        g("s_waitcnt vmcnt(0) lgkmcnt(0)")
        stamp(g, 31)
        g("s_memtime s[84:85]")
        g("s_waitcnt lgkmcnt(0)")
        g("s_sub_u32 s84, s84, s86")
        g("v_writelane_b32 v247, s84, 30")
        g("s_lshl_b32 s6, s2, 8")
        g(f"s_add_u32 s6, s6, {STAMP_OFF + off}")
        g("s_mov_b64 exec, 0xffffffff")
        g("v_and_b32 v1, 63, v0")
        g("v_lshlrev_b32 v1, 2, v1")
        g("buffer_store_dword v247, v1, s[64:67], s6 offen")

def layernorm_row(g, vx, vt, s0):
    f = [vt + i for i in range(8)]
    T = vt + 8
    for i in range(4):
        g(f"v_lshlrev_b32 v{f[2*i]}, 16, v{vx+i}")
        g(f"v_and_b32 v{f[2*i+1]}, 0xffff0000, v{vx+i}")
    g(f"v_add_f32 v{T}, v{f[0]}, v{f[1]}")
    for i in range(2, 8):
        g(f"v_add_f32 v{T}, v{T}, v{f[i]}")
    dpp_reduce(g, "v_add_f32", T, s0)
    g(f"v_mov_b32 v{T+1}, s{s0}")
    g(f"v_mul_f32 v{T+1}, 0x3b000000, v{T+1}")
    g(f"v_sub_f32 v{T+2}, v{f[0]}, v{T+1}")
    g(f"v_mul_f32 v{T}, v{T+2}, v{T+2}")
    for i in range(1, 8):
        g(f"v_sub_f32 v{T+2}, v{f[i]}, v{T+1}")
        g(f"v_fmac_f32 v{T}, v{T+2}, v{T+2}")
    dpp_reduce(g, "v_add_f32", T, s0)
    g(f"v_mov_b32 v{T+2}, s{s0}")
    g(f"v_mul_f32 v{T+2}, 0x3b000000, v{T+2}")
    rb(g, T + 1, T + 3)
    rb(g, T + 2, T + 3)
    g(f"v_add_f32 v{T+2}, 0x3727c5ac, v{T+2}")
    rb(g, T + 2, T + 3)
    g(f"v_sqrt_f32 v{T+2}, v{T+2}")
    g("s_nop 0")
    rb(g, T + 2, T + 3)
    g(f"v_rcp_f32 v{T+3}, v{T+2}")
    g("s_nop 0")
    for i in range(8):
        g(f"v_sub_f32 v{f[i]}, v{f[i]}, v{T+1}")
        rb(g, f[i], T + 4)
        g(f"v_mul_f32 v{T+4}, v{f[i]}, v{T+3}")
        g(f"v_fma_f32 v{T+5}, -v{T+4}, v{T+2}, v{f[i]}")
        g(f"v_fma_f32 v{f[i]}, v{T+5}, v{T+3}, v{T+4}")
        rb(g, f[i], T + 4)

def silu_inplace(g, v, t):
    g(f"v_mul_f32 v{t}, 0xbfb8aa3b, v{v}")
    g(f"v_exp_f32 v{t}, v{t}")
    g("s_nop 0")
    g(f"v_add_f32 v{t}, 1.0, v{t}")
    g(f"v_rcp_f32 v{t}, v{t}")
    g("s_nop 0")
    g(f"v_mul_f32 v{v}, v{v}, v{t}")


K0_WQ, K0_FF, K0_XN = 0, 16384, 32768
K0_LDS = 36864
def gen_k0(g):
    name = "k0_kernel"
    g.raw(f".globl {name}")
    g.raw(".p2align 8")
    g.raw(f".type {name},@function")
    g.raw(f"{name}:")
    g("s_cmp_ge_u32 s2, 256")
    g("s_cbranch_scc1 K0_done")
    g("s_load_dwordx16 s[16:31], s[0:1], 0")
    g("s_load_dwordx8 s[32:39], s[0:1], 64")
    g("s_load_dwordx4 s[40:43], s[0:1], 96")
    g("v_lshrrev_b32 v1, 6, v0")
    g("v_and_b32 v0, 0xff, v0")
    g("v_readfirstlane_b32 s3, v1")
    g("v_and_b32 v1, 63, v0")
    g("v_lshrrev_b32 v2, 4, v1")
    g("v_and_b32 v3, 15, v1")
    g("v_lshrrev_b32 v40, 2, v3")
    g("v_and_b32 v41, 3, v3")
    g("v_lshlrev_b32 v4, 4, v1")
    g("s_and_b32 s68, s2, 7")
    g("s_lshl_b32 s68, s68, 2")
    g("s_lshr_b32 s4, s2, 3")
    g("s_and_b32 s4, s4, 3")
    g("s_add_u32 s68, s68, s4")
    g("s_lshr_b32 s69, s2, 5")
    g("s_mov_b32 s4, 0x12492493")
    g("s_mul_hi_u32 s71, s2, s4")
    g("s_mul_i32 s4, s71, 14")
    g("s_sub_u32 s70, s2, s4")
    g("s_waitcnt lgkmcnt(0)")
    srd(g, 64, 42, WS_SIZE)
    srd(g, 44, 20, 512 * 8192)
    srd(g, 48, 32, 512 * 3584)
    srd(g, 52, 34, 512 * 3584)
    srd(g, 56, 16, 4096)
    g("s_lshl_b32 s4, s3, 10")
    g("buffer_load_dwordx4 v[8:11], v4, s[56:59], s4 offen")
    g("s_and_b32 s5, s3, 1")
    g("s_lshl_b32 s5, s5, 3")
    g("v_lshlrev_b32 v5, 1, v2")
    g("v_add_u32 v5, s5, v5")
    g("v_xor_b32 v5, v5, v3")
    g("v_lshlrev_b32 v5, 4, v5")
    g("v_lshl_add_u32 v6, v2, 13, v5")
    g("s_lshl_b32 s6, s68, 8")
    g("s_lshl_b32 s7, s69, 19")
    g("s_add_u32 s6, s6, s7")
    g("s_lshl_b32 s7, s3, 15")
    g("s_add_u32 s6, s6, s7")
    g("s_lshl_b32 s8, s3, 10")
    for n in range(4):
        g("s_mov_b32 m0, s8")
        g("s_add_u32 s8, s8, 4096")
        g("buffer_load_dwordx4 v6, s[44:47], s6 offen nt lds")
        g("s_add_u32 s6, s6, 131072")
    g("s_cmp_ge_u32 s2, 224")
    g("s_cbranch_scc1 K0_noffn")
    g("s_mov_b32 s8, 3584")
    g("v_mul_lo_u32 v12, v2, s8")
    g("v_add_u32 v12, v12, v5")
    g("s_lshl_b32 s7, s70, 8")
    g("s_lshl_b32 s9, s71, 5")
    g("s_lshl_b32 s10, s3, 2")
    g("s_add_u32 s9, s9, s10")
    g("s_mul_i32 s9, s9, 3584")
    g("s_add_u32 s7, s7, s9")
    g("s_lshl_b32 s8, s3, 10")
    g(f"s_add_u32 s8, s8, {K0_FF}")
    for mat in range(2):
        for ii in range(2):
            g(f"s_add_u32 s10, s8, {mat*8192 + ii*4096}")
            g("s_mov_b32 m0, s10")
            g(f"s_add_u32 s9, s7, {ii*16*3584}")
            g(f"buffer_load_dwordx4 v12, s[{48+4*mat}:{51+4*mat}], s9 offen nt lds")
    g("K0_noffn:")
    if os.environ.get("PFCKV"):
        srd(g, 60, 18, 16 << 20)
        g("s_lshr_b32 s74, s2, 3")
        g("s_and_b32 s74, s74, 1")
        g("s_and_b32 s4, s2, 7")
        g("s_lshr_b32 s5, s2, 4")
        g("s_lshl_b32 s5, s5, 3")
        g("s_or_b32 s4, s4, s5")
        g("s_lshl_b32 s7, s4, 17")
        g("s_lshl_b32 s8, s74, 16")
        g("s_add_u32 s7, s7, s8")
        g("s_lshl_b32 s8, s3, 14")
        g("s_add_u32 s7, s7, s8")
        for n in range(16):
            g(f"buffer_load_dwordx4 v[{64+4*(n&3)}:{67+4*(n&3)}], v4, s[60:63], s7 offen" + os.environ["PFCKV"].replace("_", " "))
            g("s_add_u32 s7, s7, 1024")
    g("s_waitcnt vmcnt(4)")
    layernorm_row(g, 8, 20, 72)
    for i in range(4):
        g(f"v_cvt_pk_bf16_f32 v{36+i}, v{20+2*i}, v{21+2*i}")
    g("v_lshrrev_b32 v14, 2, v1")
    g("v_lshlrev_b32 v14, 6, v14")
    g("v_and_b32 v15, 1, v1")
    g("v_lshl_add_u32 v14, v15, 5, v14")
    g("v_bfe_u32 v15, v1, 1, 1")
    g("v_lshl_add_u32 v14, v15, 3, v14")
    g("s_lshl_b32 s4, s3, 10")
    g(f"s_add_u32 s4, s4, {K0_XN}")
    g("v_add_u32 v14, s4, v14")
    g("ds_write_b64 v14, v[36:37]")
    g("ds_write_b64 v14, v[38:39] offset:16")
    g("s_cmp_lg_u32 s2, 0")
    g("s_cbranch_scc1 K0_noxn")
    g("s_lshl_b32 s4, s3, 10")
    g("buffer_store_dwordx4 v[36:39], v4, s[64:67], s4 offen")
    g("K0_noxn:")
    g("v_and_b32 v42, 1, v2")
    g("v_lshl_add_u32 v42, v42, 2, v40")
    g("v_lshl_add_u32 v43, v2, 2, v40")
    g("v_lshlrev_b32 v43, 8, v43")
    g("v_lshl_add_u32 v43, v41, 3, v43")
    g("s_lshl_b32 s4, s3, 1")
    g("v_xor_b32 v44, s4, v42")
    g("v_lshl_add_u32 v44, v44, 5, v43")
    g("s_add_u32 s4, s4, 1")
    g("v_xor_b32 v45, s4, v42")
    g("v_lshl_add_u32 v45, v45, 5, v43")
    g("v_lshlrev_b32 v48, 10, v41")
    g("v_lshl_add_u32 v48, v2, 4, v48")
    g(f"v_add_u32 v48, {K0_XN}, v48")
    g("s_waitcnt vmcnt(0) lgkmcnt(0)")
    g("s_barrier")
    g("v_mov_b32 v16, -1\nv_mov_b32 v17, -1\nv_mov_b32 v18, -1\nv_mov_b32 v19, -1")
    g("v_lshlrev_b32 v13, 4, v0")
    g("s_lshl_b32 s7, s2, 15")
    g(f"s_add_u32 s7, s7, {OPART_OFF}")
    g("s_cmp_lg_u32 s3, 0")
    g("s_cbranch_scc1 K0_noml")
    g("s_lshl_b32 s7, s2, 7")
    g(f"s_add_u32 s8, s7, {ML_OFF}")
    g("s_mov_b64 exec, 0xff")
    g("buffer_store_dwordx4 v[16:19], v13, s[64:67], s8 offen")
    g("v_mov_b32 v20, 0\nv_mov_b32 v21, 0\nv_mov_b32 v22, 0\nv_mov_b32 v23, 0")
    g(f"s_add_u32 s8, s7, {FLC_OFF}")
    g("buffer_store_dwordx4 v[20:23], v13, s[64:67], s8 offen")
    g("s_mov_b64 exec, 0xffffffff")
    g("s_lshl_b32 s7, s2, 9")
    g(f"s_add_u32 s8, s7, {QABS_OFF}")
    g("buffer_store_dwordx4 v[16:19], v13, s[64:67], s8 offen")
    g("s_mov_b64 exec, -1")
    g("K0_noml:")
    g("s_lshl_b32 s4, s69, 7")
    g("v_add_u32 v52, s4, v48")
    g("ds_read_b128 v[96:99], v52")
    g("ds_read_b128 v[100:103], v52 offset:64")
    for d in range(2):
        for s_ in range(2):
            for half in range(2):
                rr = 104 + (d * 2 + s_) * 4 + half * 2
                g(f"ds_read_b64_tr_b16 v[{rr}:{rr+1}], v{44+d} offset:{K0_WQ + s_*8192 + half*4096}")
    g("s_waitcnt lgkmcnt(0)")
    for d in range(2):
        g(f"v_mfma_f32_16x16x32_bf16 v[{80+4*d}:{83+4*d}], v[{104+8*d}:{107+8*d}], v[96:99], 0")
        g(f"v_mfma_f32_16x16x32_bf16 v[{80+4*d}:{83+4*d}], v[{108+8*d}:{111+8*d}], v[100:103], v[{80+4*d}:{83+4*d}]")
    g("v_lshlrev_b32 v51, 9, v41")
    g("v_lshl_add_u32 v51, v2, 4, v51")
    g("s_lshl_b32 s4, s68, 14")
    g("s_lshl_b32 s5, s69, 11")
    g("s_add_u32 s4, s4, s5")
    g("s_lshl_b32 s5, s3, 7")
    g("s_add_u32 s4, s4, s5")
    g(f"s_add_u32 s4, s4, {QP_OFF}")
    g("s_nop 7")
    g("v_cmp_gt_u32 vcc, 4, v3")
    g("s_and_saveexec_b64 s[10:11], vcc")
    for d in range(2):
        g(f"buffer_store_dwordx4 v[{80+4*d}:{83+4*d}], v51, s[64:67], s4 offen offset:{64*d}")
    g("s_mov_b64 exec, s[10:11]")
    g("s_cmp_ge_u32 s2, 224")
    g("s_cbranch_scc1 K0_done")
    g("s_lshl_b32 s4, s71, 6")
    g("v_add_u32 v52, s4, v48")
    g("ds_read_b128 v[96:99], v52")
    for mat in range(2):
        for d in range(2):
            for half in range(2):
                rr = 100 + (mat * 2 + d) * 4 + half * 2
                g(f"ds_read_b64_tr_b16 v[{rr}:{rr+1}], v{44+d} offset:{K0_FF + mat*8192 + half*4096}")
    g("s_waitcnt lgkmcnt(0)")
    for mat in range(2):
        for d in range(2):
            q = mat * 2 + d
            g(f"v_mfma_f32_16x16x32_bf16 v[{120+4*q}:{123+4*q}], v[{100+4*q}:{103+4*q}], v[96:99], 0")
    g("s_mov_b32 s4, 7168")
    g("v_mul_lo_u32 v54, v41, s4")
    g("v_lshl_add_u32 v54, v2, 4, v54")
    g("s_mul_i32 s4, s71, 57344")
    g("s_lshl_b32 s5, s70, 9")
    g("s_add_u32 s4, s4, s5")
    g("s_lshl_b32 s5, s3, 7")
    g("s_add_u32 s4, s4, s5")
    g(f"s_add_u32 s4, s4, {FFN_OFF}")
    g("s_nop 7")
    g("v_cmp_gt_u32 vcc, 4, v3")
    g("s_and_saveexec_b64 s[10:11], vcc")
    for mat in range(2):
        g(f"s_add_u32 s5, s4, {mat*28672}")
        for d in range(2):
            q = mat * 2 + d
            g(f"buffer_store_dwordx4 v[{120+4*q}:{123+4*q}], v54, s[64:67], s5 offen offset:{64*d}")
    g("s_mov_b64 exec, s[10:11]")
    g("K0_done:")
    g("s_endpgm")


L_CNT = XR + 1792
_lbl = [0]
def signal(g, idx):
    g("s_mov_b64 exec, 1")
    g(f"ds_add_u32 v250, v251 offset:{4*idx}")
    g("s_mov_b64 exec, -1")
def lwait(g, idx, cnt, sleep=0):
    _lbl[0] += 1
    L = f"LW{_lbl[0]}"
    g(f"{L}:")
    if sleep:
        g(f"s_sleep {sleep}")
    g(f"ds_read_b32 v252, v250 offset:{4*idx}")
    g("s_waitcnt lgkmcnt(0)")
    g("v_readfirstlane_b32 s79, v252")
    g(f"s_cmp_lt_u32 s79, {cnt}")
    g(f"s_cbranch_scc1 {L}")

def gen_kernel(g):
    name = "k1_kernel"
    g.raw(f".globl {name}")
    g.raw(".p2align 8")
    g.raw(f".type {name},@function")
    g.raw(f"{name}:")
    g("s_cmp_ge_u32 s2, 256")
    g("s_cbranch_scc1 L_done")
    stamp(g, 0)
    if DEBUG:
        g("s_memtime s[86:87]")
    g("s_load_dwordx16 s[16:31], s[0:1], 0")
    g("s_load_dwordx8 s[32:39], s[0:1], 64")
    g("s_load_dwordx4 s[40:43], s[0:1], 96")
    g("v_lshrrev_b32 v1, 6, v0")
    g("v_and_b32 v0, 0xff, v0")
    g("v_readfirstlane_b32 s77, v1")
    g("v_and_b32 v1, 63, v0")
    g("v_lshrrev_b32 v2, 4, v1")
    g("v_and_b32 v3, 15, v1")
    g("v_lshrrev_b32 v40, 2, v3")
    g("v_and_b32 v41, 3, v3")
    g("v_lshlrev_b32 v4, 4, v1")
    g(f"v_mov_b32 v250, {L_CNT}")
    g("v_mov_b32 v251, 1")
    g("v_lshlrev_b32 v252, 2, v1")
    g(f"v_add_u32 v252, {L_CNT}, v252")
    g("v_mov_b32 v253, 0")
    g("ds_write_b32 v252, v253")
    g("s_and_b32 s3, s77, 3")
    g("s_lshr_b32 s77, s77, 2")
    g("s_and_b32 s68, s2, 7")
    g("s_lshl_b32 s68, s68, 2")
    g("s_lshr_b32 s4, s2, 3")
    g("s_and_b32 s4, s4, 3")
    g("s_add_u32 s68, s68, s4")
    g("s_lshr_b32 s69, s2, 5")
    g("s_lshr_b32 s74, s2, 3")
    g("s_and_b32 s74, s74, 1")
    g("s_and_b32 s4, s2, 7")
    g("s_lshr_b32 s5, s2, 4")
    g("s_lshl_b32 s5, s5, 3")
    g("s_or_b32 s4, s4, s5")
    g("s_lshr_b32 s75, s4, 5")
    g("s_and_b32 s76, s4, 31")
    g("s_waitcnt lgkmcnt(0)")
    g("s_barrier")
    srd(g, 64, 42, WS_SIZE)
    g("s_cmp_eq_u32 s77, 0")
    g("s_cbranch_scc0 L_loader")
    gen_compute(g)
    g("s_branch L_done")
    g("L_loader:")
    gen_loader(g)
    g("L_done:")
    g("s_endpgm")

def gen_loader(g):
    srd(g, 44, 18, 16 << 20)
    g("s_lshl_b32 s7, s75, 22")
    g("s_lshl_b32 s8, s76, 17")
    g("s_add_u32 s7, s7, s8")
    g("s_lshl_b32 s8, s3, 15")
    g("s_add_u32 s7, s7, s8")
    g(f"s_mul_i32 s8, s3, {32*RS}")
    for n in range(32):
        g("s_mov_b32 m0, s8")
        g(f"s_add_u32 s8, s8, {RS}")
        g("buffer_load_dwordx4 v4, s[44:47], s7 offen nt lds")
        g("s_add_u32 s7, s7, 1024")
    stamp(g, 4)
    g("s_and_b32 s5, s3, 1")
    g("s_lshl_b32 s5, s5, 3")
    g("v_lshlrev_b32 v5, 1, v2")
    g("v_add_u32 v5, s5, v5")
    g("v_xor_b32 v5, v5, v3")
    g("v_lshlrev_b32 v5, 4, v5")
    g("v_lshl_add_u32 v6, v2, 13, v5")
    srd(g, 48, 26, 32 * 131072)
    g("s_lshl_b32 s6, s68, 17")
    g("s_lshl_b32 s7, s3, 15")
    g("s_add_u32 s6, s6, s7")
    NW1 = int(os.environ.get("NW1", "0"))
    def wo_loads(lo, hi, tag):
        for jj in range(8):
            g(f"s_cmp_eq_u32 s69, {jj}")
            g(f"s_cbranch_scc1 LL_wo{tag}{jj}")
        for jj in range(8):
            g(f"LL_wo{tag}{jj}:")
            for n in range(lo, hi):
                r = (n + 4 * jj) & 31
                g(f"s_add_u32 s7, s6, {r*1024}")
                g(f"buffer_load_dwordx4 v[{64+4*r}:{67+4*r}], v4, s[48:51], s7 offen nt")
            g(f"s_branch LL_wod{tag}")
        g(f"LL_wod{tag}:")
    if NW1:
        wo_loads(0, NW1, "a")
    g(f"s_waitcnt vmcnt({NW1})")
    signal(g, 1)
    stamp(g, 5)
    wo_loads(NW1, 32, "b")
    srd(g, 44, 24, 512 * 8192)
    g("s_lshl_b32 s6, s68, 8")
    g("s_lshl_b32 s7, s69, 19")
    g("s_add_u32 s6, s6, s7")
    g("s_lshl_b32 s7, s3, 15")
    g("s_add_u32 s6, s6, s7")
    for n in range(4):
        g(f"buffer_load_dwordx4 v[{192+4*n}:{195+4*n}], v6, s[44:47], s6 offen nt")
        g("s_add_u32 s6, s6, 131072")
    srd(g, 52, 36, 1792 * 1024)
    g("s_lshl_b32 s4, s2, 3")
    g("s_lshl_b32 s5, s3, 1")
    g("s_add_u32 s4, s4, s5")
    g("s_lshl_b32 s4, s4, 10")
    for i in range(2):
        g(f"buffer_load_dwordx4 v[{208+4*i}:{211+4*i}], v4, s[52:55], s4 offen offset:{1024*i} nt")
    stamp(g, 6)
    g("s_waitcnt vmcnt(0)")
    stamp(g, 7)
    lwait(g, 3, 4, 2)
    g("s_lshl_b32 s8, s3, 10")
    g(f"s_add_u32 s8, s8, {L_WUV}")
    g("v_add_u32 v7, s8, v4")
    for n in range(4):
        g(f"ds_write_b128 v7, v[{192+4*n}:{195+4*n}] offset:{n*4096}")
    lwait(g, 11, 4, 2)
    g(f"s_mul_i32 s8, s3, {32*RS}")
    g("v_add_u32 v7, s8, v4")
    for n in range(32):
        g(f"ds_write_b128 v7, v[{64+4*n}:{67+4*n}] offset:{n*RS}")
    g("s_lshl_b32 s8, s3, 11")
    g(f"s_add_u32 s8, s8, {L_WD}")
    g("v_add_u32 v7, s8, v4")
    for i in range(2):
        g(f"ds_write_b128 v7, v[{208+4*i}:{211+4*i}] offset:{1024*i}")
    g("s_waitcnt lgkmcnt(0)")
    signal(g, 6)
    stamp(g, 8)
    if DEBUG:
        g("s_cmp_lg_u32 s3, 0")
        g("s_cbranch_scc1 L_done")
    stamp_flush(g, 128)

def gen_compute(g):
    srd(g, 48, 22, 512 * 8192)
    srd(g, 52, 16, 4096)
    g("v_lshlrev_b32 v5, 3, v1")
    g("s_lshl_b32 s4, s68, 14")
    g("s_lshl_b32 s5, s3, 9")
    g("s_add_u32 s4, s4, s5")
    g(f"s_add_u32 s4, s4, {QP_OFF}")
    for p in range(8):
        g(f"buffer_load_dwordx2 v[{96+2*p}:{97+2*p}], v5, s[64:67], s4 offen offset:{2048*p if p < 2 else 0}" if p < 2 else f"buffer_load_dwordx2 v[{96+2*p}:{97+2*p}], v5, s[64:67], s5 offen offset:{2048*(p&1)}")
        if p & 1:
            g(f"s_add_u32 s5, s4, {2048*(p+1)}")
    g("s_lshl_b32 s6, s68, 8")
    g("s_lshl_b32 s7, s69, 6")
    g("s_lshl_b32 s8, s3, 4")
    g("s_add_u32 s7, s7, s8")
    g("v_add_u32 v7, s7, v3")
    g("v_lshlrev_b32 v7, 13, v7")
    g("v_lshl_add_u32 v7, v2, 4, v7")
    g("v_add_u32 v7, s6, v7")
    for ks in range(4):
        g(f"buffer_load_dwordx4 v[{64+4*ks}:{67+4*ks}], v7, s[48:51], 0 offen offset:{64*ks} nt")
    g("v_and_b32 v42, 1, v2")
    g("v_lshl_add_u32 v42, v42, 2, v40")
    g("v_lshl_add_u32 v43, v2, 2, v40")
    g("v_lshlrev_b32 v43, 8, v43")
    g("v_lshl_add_u32 v43, v41, 3, v43")
    g("s_lshl_b32 s4, s3, 8")
    g(f"s_add_u32 s4, s4, {L_QX}")
    g("v_lshlrev_b32 v49, 2, v1")
    g("v_add_u32 v49, s4, v49")
    g("v_lshlrev_b32 v50, 8, v41")
    g("v_lshl_add_u32 v50, v2, 4, v50")
    g(f"v_add_u32 v50, {L_QX}, v50")
    g("s_waitcnt vmcnt(4)")
    stamp(g, 1)
    for p in range(1, 8):
        g(f"v_add_f32 v96, v96, v{96+2*p}")
        g(f"v_add_f32 v97, v97, v{97+2*p}")
    g("v_cvt_pk_bf16_f32 v88, v96, v97")
    g("ds_write_b32 v49, v88")
    g("s_waitcnt lgkmcnt(0)")
    signal(g, 0)
    lwait(g, 0, 4)
    for ks in range(4):
        g(f"ds_read_b128 v[{96+4*ks}:{99+4*ks}], v50 offset:{64*ks}")
    g("s_waitcnt vmcnt(0) lgkmcnt(0)")
    g("v_mfma_f32_16x16x32_bf16 v[80:83], v[64:67], v[96:99], 0")
    for ks in range(1, 4):
        g(f"v_mfma_f32_16x16x32_bf16 v[80:83], v[{64+4*ks}:{67+4*ks}], v[{96+4*ks}:{99+4*ks}], v[80:83]")
    g("v_lshlrev_b32 v51, 15, v41")
    g("v_lshl_add_u32 v51, v2, 3, v51")
    g("s_lshl_b32 s4, s68, 10")
    g("s_lshl_b32 s5, s69, 7")
    g("s_add_u32 s4, s4, s5")
    g("s_lshl_b32 s5, s3, 5")
    g("s_add_u32 s4, s4, s5")
    g(f"s_add_u32 s4, s4, {QABS_OFF}")
    g("s_nop 7")
    g("v_cvt_pk_bf16_f32 v88, v80, v81")
    g("v_cvt_pk_bf16_f32 v89, v82, v83")
    g("v_cmp_gt_u32 vcc, 4, v3")
    g("s_and_saveexec_b64 s[10:11], vcc")
    g("buffer_store_dwordx2 v[88:89], v51, s[64:67], s4 offen sc1")
    g("s_mov_b64 exec, s[10:11]")
    stamp(g, 2)
    g("s_cmp_ge_u32 s2, 224")
    g("s_cbranch_scc1 LC_nf1")
    g("v_and_b32 v7, 7, v1")
    g("v_lshlrev_b32 v7, 2, v7")
    g("v_lshrrev_b32 v30, 3, v1")
    g("s_mov_b32 s4, 7168")
    g("v_mul_lo_u32 v30, v30, s4")
    g("v_add_u32 v7, v7, v30")
    g("s_mul_i32 s4, s3, 229376")
    g("s_lshl_b32 s5, s2, 5")
    g("s_add_u32 s4, s4, s5")
    g(f"s_add_u32 s4, s4, {FFN_OFF}")
    for i in range(4):
        g(f"buffer_load_dword v{232+i}, v7, s[64:67], s4 offen")
        g("s_add_u32 s4, s4, 57344")
    g("LC_nf1:")
    srd(g, 48, 30, 1024)
    g("s_lshr_b32 s4, s2, 6")
    g("s_lshl_b32 s4, s4, 10")
    g("buffer_load_dwordx4 v[236:239], v4, s[64:67], s4 offen")
    g("buffer_load_dwordx4 v[240:243], v4, s[48:51], 0 offen")
    g("v_and_b32 v246, 7, v1")
    g("v_lshlrev_b32 v246, 1, v246")
    g("s_and_b32 s5, s2, 63")
    g("s_lshl_b32 s5, s5, 4")
    g("s_add_u32 s78, s5, s4")
    g("buffer_load_ushort v244, v246, s[52:55], s78 offen")
    g("buffer_load_ushort v245, v246, s[64:67], s78 offen")
    g("s_lshl_b32 s6, s3, 2")
    for i in range(4):
        g(f"s_add_u32 s7, s6, {i}")
        g(f"v_xor_b32 v{24+i}, s7, v1")
        g(f"v_lshlrev_b32 v{24+i}, 4, v{24+i}")
        g("s_lshl_b32 s7, s7, 10")
        g(f"s_add_u32 s7, s7, {L_QA}")
        g(f"v_add_u32 v{24+i}, s7, v{24+i}")
    g("s_lshl_b32 s5, s75, 5")
    g("s_lshl_b32 s6, s74, 4")
    g("s_add_u32 s5, s5, s6")
    g("s_lshl_b32 s6, s3, 2")
    g("s_add_u32 s5, s5, s6")
    g("s_lshl_b32 s5, s5, 10")
    g(f"s_add_u32 s5, s5, {QABS_OFF}")
    g("s_mov_b32 s82, 0")
    if os.environ.get("LATEPOLL"):
        lwait(g, 1, 4, 2)
    else:
        g("s_sleep 16")
    g("LC_pollA:")
    g("s_sleep 8" if not os.environ.get("LATEPOLL") else "s_sleep 1")
    for i in range(4):
        g(f"buffer_load_dwordx4 v[{8+4*i}:{11+4*i}], v4, s[64:67], s5 offen offset:{1024*i} sc1")
    g("s_waitcnt vmcnt(0)")
    g("v_max3_u32 v28, v8, v9, v10")
    for i in range(6):
        g(f"v_max3_u32 v28, v28, v{11+2*i}, v{12+2*i}")
    g("v_max_u32 v28, v28, v23")
    g("v_cmp_eq_u32 vcc, -1, v28")
    g("s_add_u32 s82, s82, 1")
    g(f"s_cmp_gt_u32 s82, {SPIN_MAX}")
    g("s_cbranch_scc1 LC_pollAd")
    g("s_cbranch_vccnz LC_pollA")
    g("LC_pollAd:")
    stamp(g, 3)
    for i in range(4):
        g(f"ds_write_b128 v{24+i}, v[{8+4*i}:{11+4*i}]")
    for i in range(4):
        g(f"v_add_u32 v6, {4*i}, v2")
        g("v_xor_b32 v6, v6, v3")
        g("v_lshlrev_b32 v6, 4, v6")
        g(f"v_lshl_add_u32 v{8+i}, v3, 10, v6")
        g(f"v_add_u32 v{8+i}, {L_QA}, v{8+i}")
    g("s_lshl_b32 s4, s3, 5")
    g("v_add_u32 v12, s4, v3")
    g(f"s_mov_b32 s4, {RS}")
    g("v_mul_lo_u32 v12, v12, s4")
    g("v_lshl_add_u32 v12, v2, 4, v12")
    for i in range(8):
        g(f"v_mov_b32 v{48+i}, 0")
    g("s_waitcnt lgkmcnt(0)")
    signal(g, 2)
    lwait(g, 2, 4)
    for s_ in range(16):
        g(f"ds_read_b128 v[{64+4*s_}:{67+4*s_}], v{8+(s_&3)} offset:{(s_>>2)*256}")
    lwait(g, 1, 4, 1)
    stamp(g, 4)
    def sissue(grp):
        e = grp & 1
        for kk in range(4):
            s_ = grp * 4 + kk
            for T in range(2):
                rr = 128 + e * 32 + (kk * 2 + T) * 4
                g(f"ds_read_b128 v[{rr}:{rr+3}], v12 offset:{T*16*RS + s_*64}")
    def scompute(grp):
        e = grp & 1
        for kk in range(4):
            s_ = grp * 4 + kk
            for T in range(2):
                rr = 128 + e * 32 + (kk * 2 + T) * 4
                g(f"v_mfma_f32_16x16x32_bf16 v[{48+4*T}:{51+4*T}], v[{rr}:{rr+3}], v[{64+4*s_}:{67+4*s_}], v[{48+4*T}:{51+4*T}]")
    sissue(0)
    for grp in range(4):
        if grp < 3:
            sissue(grp + 1)
            g("s_waitcnt lgkmcnt(8)")
        else:
            g("s_waitcnt lgkmcnt(0)")
        scompute(grp)
    g("v_lshlrev_b32 v13, 6, v3")
    g("v_lshl_add_u32 v14, v2, 2, v13")
    g("s_lshl_b32 s4, s3, 4")
    g("v_add_u32 v14, s4, v14")
    g(f"v_add_u32 v15, {L_MX}, v14")
    g(f"v_add_u32 v16, {L_MX}, v13")
    g("s_nop 3")
    for i in range(8):
        rb(g, 48 + i, 56)
        g(f"v_mul_f32 v{48+i}, 0x3db504f3, v{48+i}")
        rb(g, 48 + i, 56)
    g("v_max3_f32 v56, v48, v49, v50")
    g("v_max3_f32 v56, v56, v51, v52")
    g("v_max3_f32 v56, v56, v53, v54")
    g("v_max_f32 v56, v56, v55")
    g("ds_write_b32 v15, v56")
    g("s_waitcnt lgkmcnt(0)")
    signal(g, 3)
    lwait(g, 3, 4)
    for i in range(4):
        g(f"ds_read_b128 v[{128+4*i}:{131+4*i}], v16 offset:{16*i}")
    g("s_waitcnt lgkmcnt(0)")
    g("v_max3_f32 v57, v128, v129, v130")
    for i in range(6):
        g(f"v_max3_f32 v57, v57, v{131+2*i}, v{132+2*i}")
    g("v_max_f32 v57, v57, v143")
    for i in range(8):
        g(f"v_sub_f32 v{48+i}, v{48+i}, v57")
        g(f"v_mul_f32 v{48+i}, 0x3fb8aa3b, v{48+i}")
        g(f"v_exp_f32 v{48+i}, v{48+i}")
    g("s_nop 0")
    g("v_add_f32 v58, v48, v49")
    for i in range(2, 8):
        g(f"v_add_f32 v58, v58, v{48+i}")
    for i in range(4):
        g(f"v_cvt_pk_bf16_f32 v{60+i}, v{48+2*i}, v{49+2*i}")
    g(f"v_add_u32 v15, {L_LS}, v14")
    g("ds_write_b32 v15, v58")
    g("s_lshl_b32 s4, s3, 10")
    g(f"s_add_u32 s4, s4, {L_P}")
    g("v_add_u32 v17, s4, v4")
    g("ds_write_b128 v17, v[60:63]")
    g(f"v_add_u32 v17, {L_P}, v4")
    g("v_lshl_add_u32 v18, v2, 2, v40")
    g(f"s_mov_b32 s4, {RS}")
    g("v_mul_lo_u32 v18, v18, s4")
    g("s_lshl_b32 s4, s3, 8")
    g("v_add_u32 v18, s4, v18")
    g("v_lshl_add_u32 v20, v41, 4, v18")
    g(f"v_add_u32 v21, {64*RS}, v20")
    g("v_lshl_add_u32 v18, v41, 3, v18")
    g(f"v_add_u32 v19, {64*RS}, v18")
    g("s_waitcnt lgkmcnt(0)")
    signal(g, 4)
    lwait(g, 4, 4)
    stamp(g, 5)
    for u in range(4):
        g(f"ds_read_b128 v[{64+4*u}:{67+4*u}], v17 offset:{u*1024}")
    g(f"v_add_u32 v16, {L_LS}, v13")
    for i in range(4):
        g(f"ds_read_b128 v[{80+4*i}:{83+4*i}], v16 offset:{16*i}")
    def tr_pipeline(bfrag, accbase, tmpbase, areg, coloff):
        def pissue(ct):
            e = ct & 1
            for u in range(4):
                for half in range(2):
                    rr = tmpbase + e * 16 + u * 4 + half * 2
                    off = (32 * (u & 1) + 16 * half) * RS + coloff(ct)
                    g(f"ds_read_b64_tr_b16 v[{rr}:{rr+1}], v{areg + (u>>1)} offset:{off}")
        def pcompute(ct):
            e = ct & 1
            for u in range(4):
                rr = tmpbase + e * 16 + u * 4
                c = "0" if u == 0 else f"v[{accbase+4*ct}:{accbase+3+4*ct}]"
                g(f"v_mfma_f32_16x16x32_bf16 v[{accbase+4*ct}:{accbase+3+4*ct}], v[{rr}:{rr+3}], v[{bfrag+4*u}:{bfrag+3+4*u}], {c}")
        pissue(0)
        for ct in range(8):
            if ct < 7:
                pissue(ct + 1)
                g("s_waitcnt lgkmcnt(8)")
            else:
                g("s_waitcnt lgkmcnt(0)")
            pcompute(ct)
    tr_pipeline(64, 192, 128, 20, lambda ct: (ct >> 1) * 64 + (ct & 1) * 8)
    signal(g, 11)
    g("v_add_f32 v59, v80, v81")
    for i in range(2, 16):
        g(f"v_add_f32 v59, v59, v{80+i}")
    g("v_mov_b32 v58, v57")
    g("v_lshlrev_b32 v22, 17, v3")
    g("v_lshl_add_u32 v22, v2, 4, v22")
    g("s_lshl_b32 s4, s74, 21")
    g("s_lshl_b32 s5, s3, 15")
    g("s_add_u32 s4, s4, s5")
    g("s_lshl_b32 s5, s75, 12")
    g("s_add_u32 s4, s4, s5")
    g("s_lshl_b32 s5, s76, 7")
    g("s_add_u32 s4, s4, s5")
    g(f"s_add_u32 s4, s4, {OPART_OFF}")
    g("s_add_u32 s5, s4, 16384")
    for p in range(4):
        for q in range(4):
            g(f"v_cvt_pk_bf16_f32 v{128+4*p+q}, v{192+8*p+2*q}, v{193+8*p+2*q}")
        g(f"buffer_store_dwordx4 v[{128+4*p}:{131+4*p}], v22, s[64:67], s{4+(p>>1)} offen offset:{(p&1)*64} sc1")
    stamp(g, 17)
    g("s_cmp_ge_u32 s2, 224")
    g("s_cbranch_scc1 LC_nf2")
    g("v_add_f32 v232, v232, v233")
    g("v_add_f32 v234, v234, v235")
    g("v_add_f32 v232, v232, v234")
    g("v_lshlrev_b32 v22, 2, v0")
    g(f"v_add_u32 v22, {L_HB}, v22")
    g("ds_write_b32 v22, v232")
    g("LC_nf2:")
    g("s_waitcnt vmcnt(0) lgkmcnt(0)")
    signal(g, 5)
    g("s_cmp_lg_u32 s3, 0")
    g("s_cbranch_scc1 LC_noml")
    lwait(g, 5, 4)
    g("v_lshlrev_b32 v21, 10, v3")
    g("s_lshl_b32 s4, s74, 14")
    g("s_lshl_b32 s5, s75, 8")
    g("s_add_u32 s4, s4, s5")
    g("s_lshl_b32 s5, s76, 3")
    g("s_add_u32 s4, s4, s5")
    g(f"s_add_u32 s4, s4, {ML_OFF}")
    g("s_mov_b64 exec, 0xffff")
    g("buffer_store_dwordx2 v[58:59], v21, s[64:67], s4 offen sc1")
    g("s_mov_b64 exec, -1")
    g("LC_noml:")
    stamp(g, 6)
    lwait(g, 5, 4)
    lwait(g, 6, 4, 1)
    stamp(g, 18)
    g("v_lshlrev_b32 v36, 11, v41")
    g("v_lshl_add_u32 v36, v2, 4, v36")
    g("s_cmp_ge_u32 s2, 224")
    g("s_cbranch_scc1 LC_nf3")
    g("s_lshl_b32 s7, s2, 13")
    g("s_lshl_b32 s5, s3, 9")
    g("s_add_u32 s7, s7, s5")
    g(f"s_add_u32 s7, s7, {YPART_OFF}")
    g("v_and_b32 v22, 31, v1")
    g("v_lshlrev_b32 v22, 2, v22")
    g(f"v_add_u32 v22, {L_HB}, v22")
    for w in range(4):
        g(f"ds_read_b32 v{24+w}, v22 offset:{w*256}")
        g(f"ds_read_b32 v{28+w}, v22 offset:{w*256+128}")
    g("v_lshlrev_b32 v23, 10, v42")
    g("v_lshl_add_u32 v23, v41, 3, v23")
    g("s_lshl_b32 s4, s3, 8")
    g(f"s_add_u32 s4, s4, {L_WD}")
    g("v_add_u32 v23, s4, v23")
    for mt in range(8):
        g(f"ds_read_b64_tr_b16 v[{128+4*mt}:{129+4*mt}], v23 offset:{mt*32}")
    g("s_waitcnt lgkmcnt(8)")
    g("v_add_f32 v24, v24, v25\nv_add_f32 v26, v26, v27\nv_add_f32 v24, v24, v26")
    g("v_add_f32 v28, v28, v29\nv_add_f32 v30, v30, v31\nv_add_f32 v28, v28, v30")
    rb(g, 24, 25)
    rb(g, 28, 25)
    silu_inplace(g, 24, 25)
    rb(g, 24, 25)
    g("v_mul_f32 v24, v24, v28")
    g("v_cvt_pk_bf16_f32 v24, v24, v24")
    g("v_and_b32 v22, 31, v1")
    g("v_lshlrev_b32 v22, 1, v22")
    g("s_lshl_b32 s4, s3, 6")
    g(f"s_add_u32 s4, s4, {L_HF}")
    g("v_add_u32 v22, s4, v22")
    g("ds_write_b16 v22, v24")
    g("v_lshlrev_b32 v22, 4, v41")
    g("v_and_b32 v23, 1, v2")
    g("v_lshl_add_u32 v22, v23, 3, v22")
    g("v_add_u32 v22, s4, v22")
    g("s_waitcnt lgkmcnt(0)")
    g("ds_read_b64 v[32:33], v22")
    g("v_mov_b32 v34, 0\nv_mov_b32 v35, 0")
    for mt in range(8):
        g(f"v_mov_b32 v{130+4*mt}, v{128+4*mt}")
        g(f"v_mov_b32 v{131+4*mt}, v{129+4*mt}")
    g("v_cmp_gt_u32 vcc, 2, v2")
    g("s_waitcnt lgkmcnt(0)")
    g("v_cndmask_b32 v32, 0, v32, vcc")
    g("v_cndmask_b32 v33, 0, v33, vcc")
    g("s_nop 1")
    for mt in range(8):
        g(f"v_mfma_f32_16x16x32_bf16 v[{160+4*mt}:{163+4*mt}], v[{128+4*mt}:{131+4*mt}], v[32:35], 0")
    g("s_nop 7")
    g("v_cmp_gt_u32 vcc, 4, v3")
    g("s_and_saveexec_b64 s[10:11], vcc")
    for mt in range(8):
        g(f"buffer_store_dwordx4 v[{160+4*mt}:{163+4*mt}], v36, s[64:67], s7 offen offset:{mt*64} sc1")
    g("s_mov_b64 exec, s[10:11]")
    g("LC_nf3:")
    stamp(g, 19)
    g("v_and_b32 v5, 31, v1")
    g("v_lshlrev_b32 v5, 3, v5")
    g("s_lshl_b32 s80, s68, 10")
    g("s_lshl_b32 s5, s3, 8")
    g("s_add_u32 s80, s80, s5")
    g(f"s_add_u32 s80, s80, {ML_OFF}")
    g("v_lshlrev_b32 v6, 1, v1")
    g("s_lshl_b32 s81, s68, 17")
    g("s_lshl_b32 s5, s69, 14")
    g("s_add_u32 s81, s81, s5")
    g("s_lshl_b32 s5, s3, 12")
    g("s_add_u32 s81, s81, s5")
    g(f"s_add_u32 s81, s81, {OPART_OFF}")
    g("s_mov_b32 s82, 0")
    g("LC_pollml:")
    g("s_sleep 2")
    g("buffer_load_dwordx2 v[8:9], v5, s[64:67], s80 offen sc1")
    g("s_waitcnt vmcnt(0)")
    g("v_add_f32 v10, v8, v9")
    g("v_cmp_u_f32 vcc, v10, v10")
    g("s_add_u32 s82, s82, 1")
    g(f"s_cmp_gt_u32 s82, {SPIN_MAX}")
    g("s_cbranch_scc1 LC_pollO")
    g("s_cbranch_vccnz LC_pollml")
    g("LC_pollO:")
    stamp(g, 14)
    for kc in range(32):
        g(f"buffer_load_ushort v{64+kc}, v6, s[64:67], s81 offen offset:{kc*128} sc1")
    g("v_mov_b32 v17, v8")
    dpp_reduce(g, "v_max_f32", 17, 72)
    g("v_subrev_f32 v17, s72, v8")
    g("v_mul_f32 v17, 0x3fb8aa3b, v17")
    g("v_exp_f32 v17, v17")
    g("s_nop 0")
    g("v_mul_f32 v10, v17, v9")
    dpp_reduce(g, "v_add_f32", 10, 73)
    g("v_mov_b32 v20, s73")
    g("v_mul_f32 v20, 0.5, v20")
    g("v_rcp_f32 v20, v20")
    g("v_and_b32 v21, 0x23, v1")
    g("v_bfe_u32 v22, v1, 2, 2")
    g("v_lshl_add_u32 v21, v22, 3, v21")
    g("v_bfe_u32 v22, v1, 4, 1")
    g("v_lshl_add_u32 v21, v22, 2, v21")
    g("v_lshlrev_b32 v21, 1, v21")
    g("s_lshl_b32 s12, s3, 7")
    g(f"s_add_u32 s12, s12, {L_OL}")
    g("v_add_u32 v21, s12, v21")
    g("v_mov_b32 v11, 0")
    for q in range(4):
        for i in range(8):
            g(f"v_readlane_b32 s{4+i}, v17, {8*q+i}")
        g(f"s_waitcnt vmcnt({24-8*q})")
        for i in range(8):
            kc = 8 * q + i
            g(f"v_lshlrev_b32 v{64+kc}, 16, v{64+kc}")
            g(f"v_fmac_f32 v11, s{4+i}, v{64+kc}")
    stamp(g, 15)
    g("v_mul_f32 v11, v11, v20")
    g("v_cvt_pk_bf16_f32 v11, v11, v11")
    g("ds_write_b16 v21, v11")
    g(f"v_add_u32 v24, {L_WUV}, v43")
    for dt in range(8):
        g(f"v_xor_b32 v25, {dt}, v42")
        g("v_lshl_add_u32 v25, v25, 5, v24")
        for s_ in range(2):
            for half in range(2):
                rr = 128 + dt * 8 + s_ * 4 + half * 2
                g(f"ds_read_b64_tr_b16 v[{rr}:{rr+1}], v25 offset:{s_*8192 + half*4096}")
        if dt % 2 == 1:
            g("s_waitcnt lgkmcnt(4)")
    g("s_waitcnt lgkmcnt(0)")
    signal(g, 8)
    g("v_lshlrev_b32 v22, 7, v41")
    g("v_lshl_add_u32 v22, v2, 4, v22")
    g(f"v_add_u32 v22, {L_OL}, v22")
    lwait(g, 8, 4)
    stamp(g, 7)
    g("ds_read_b128 v[44:47], v22")
    g("ds_read_b128 v[48:51], v22 offset:64")
    g("s_waitcnt lgkmcnt(0)")
    for dt in range(8):
        g(f"v_mfma_f32_16x16x32_bf16 v[{96+4*dt}:{99+4*dt}], v[{128+8*dt}:{131+8*dt}], v[44:47], 0")
        g(f"v_mfma_f32_16x16x32_bf16 v[{96+4*dt}:{99+4*dt}], v[{132+8*dt}:{135+8*dt}], v[48:51], v[{96+4*dt}:{99+4*dt}]")
    g("s_nop 7")
    for dt in range(8):
        g(f"v_cvt_pk_bf16_f32 v{44+2*dt}, v{96+4*dt}, v{97+4*dt}")
        g(f"v_cvt_pk_bf16_f32 v{45+2*dt}, v{98+4*dt}, v{99+4*dt}")
    tr_pipeline(44, 192, 64, 18, lambda ct: ct * 32)
    g("s_lshl_b32 s4, s2, 13")
    g("s_lshl_b32 s5, s3, 9")
    g("s_add_u32 s4, s4, s5")
    g(f"s_add_u32 s6, s4, {SPART_OFF}")
    g("s_nop 7")
    g("v_cmp_gt_u32 vcc, 4, v3")
    g("s_and_saveexec_b64 s[10:11], vcc")
    for mt in range(8):
        g(f"buffer_store_dwordx4 v[{192+4*mt}:{195+4*mt}], v36, s[64:67], s6 offen offset:{mt*64} sc1")
    g("s_mov_b64 exec, s[10:11]")
    stamp(g, 8)
    g("v_mov_b32 v8, 0")
    for i in range(4):
        g(f"v_lshlrev_b32 v9, 16, v{236+i}")
        g(f"v_lshlrev_b32 v10, 16, v{240+i}")
        g("v_fmac_f32 v8, v9, v10")
        g(f"v_and_b32 v9, 0xffff0000, v{236+i}")
        g(f"v_and_b32 v10, 0xffff0000, v{240+i}")
        g("v_fmac_f32 v8, v9, v10")
    dpp_reduce(g, "v_add_f32", 8, 72)
    g("v_mov_b32 v13, s72")
    rb(g, 13, 12)
    g("v_mul_f32 v13, 0xbfb8aa3b, v13")
    g("v_exp_f32 v13, v13")
    g("s_nop 0")
    g("v_add_f32 v13, 1.0, v13")
    g("v_rcp_f32 v13, v13")
    g("s_nop 0")
    rb(g, 13, 12)
    g("v_lshlrev_b32 v245, 16, v245")
    g("v_lshlrev_b32 v244, 16, v244")
    g("s_lshr_b32 s80, s2, 6")
    g("s_and_b32 s81, s2, 63")
    g("v_and_b32 v4, 7, v1")
    g("v_lshlrev_b32 v4, 2, v4")
    g("v_lshrrev_b32 v5, 3, v1")
    g("v_lshl_add_u32 v4, v5, 13, v4")
    g("s_lshl_b32 s4, s3, 19")
    g("s_lshl_b32 s5, s80, 11")
    g("s_add_u32 s4, s4, s5")
    g("s_lshl_b32 s5, s81, 5")
    g("s_add_u32 s83, s4, s5")
    g("s_waitcnt vmcnt(0)")
    signal(g, 9)
    g("s_cmp_lg_u32 s3, 0")
    g("s_cbranch_scc1 LC_nofl")
    lwait(g, 9, 4)
    g("v_lshlrev_b32 v5, 10, v1")
    g("v_mov_b32 v6, 1")
    g("s_lshl_b32 s4, s2, 2")
    g(f"s_add_u32 s4, s4, {FLC_OFF}")
    g("s_mov_b64 exec, 0xffffffff")
    g("buffer_store_dword v6, v5, s[64:67], s4 offen sc1")
    g("s_mov_b64 exec, -1")
    g("LC_nofl:")
    g("s_and_b32 s4, s2, 31")
    g("s_lshl_b32 s4, s4, 10")
    g("s_lshl_b32 s5, s3, 8")
    g("s_add_u32 s4, s4, s5")
    g(f"s_add_u32 s4, s4, {FLC_OFF}")
    g("v_lshlrev_b32 v5, 2, v1")
    g("s_mov_b32 s82, 0")
    g("LC_pollC:")
    g("s_sleep 1")
    g("buffer_load_dword v6, v5, s[64:67], s4 offen sc1")
    g("s_waitcnt vmcnt(0)")
    g("v_cmp_ne_u32 vcc, 1, v6")
    g("s_add_u32 s82, s82, 1")
    g(f"s_cmp_gt_u32 s82, {SPIN_MAX}")
    g("s_cbranch_scc1 LC_pollC2")
    g("s_cbranch_vccnz LC_pollC")
    g("LC_pollC2:")
    stamp(g, 20)
    g(f"s_add_u32 s5, s83, {SPART_OFF}")
    g(f"s_add_u32 s6, s83, {YPART_OFF}")
    for i in range(8):
        g(f"buffer_load_dword v{16+i}, v4, s[64:67], s5 offen sc1")
        g("s_add_u32 s5, s5, 65536")
    for i in range(4, 8):
        g(f"v_mov_b32 v{24+i}, 0")
    for i in range(8):
        if i == 4:
            g("s_cmp_eq_u32 s3, 3")
            g("s_cbranch_scc1 LC_y8")
        g(f"buffer_load_dword v{24+i}, v4, s[64:67], s6 offen sc1")
        g("s_add_u32 s6, s6, 65536")
    g("LC_y8:")
    g("s_waitcnt vmcnt(0)")
    for i in range(1, 8):
        g(f"v_add_f32 v16, v16, v{16+i}")
        g(f"v_add_f32 v24, v24, v{24+i}")
    stamp(g, 16)
    for msk in (8, 16):
        g(f"ds_swizzle_b32 v17, v16 offset:{(msk<<10)|0x1f}")
        g(f"ds_swizzle_b32 v25, v24 offset:{(msk<<10)|0x1f}")
        g("s_waitcnt lgkmcnt(0)")
        g("v_add_f32 v16, v16, v17")
        g("v_add_f32 v24, v24, v25")
    g("v_mov_b32 v17, v16")
    g("v_mov_b32 v25, v24")
    g("s_nop 1")
    g("v_permlane32_swap_b32 v16, v17")
    g("v_permlane32_swap_b32 v24, v25")
    g("s_nop 1")
    g("v_add_f32 v16, v16, v17")
    g("v_add_f32 v24, v24, v25")
    g("v_and_b32 v11, 7, v1")
    g("v_lshlrev_b32 v11, 2, v11")
    g(f"v_add_u32 v11, {L_FIN}, v11")
    g("s_lshl_b32 s4, s3, 6")
    g("v_add_u32 v12, s4, v11")
    g("ds_write_b32 v12, v16")
    g("ds_write_b32 v12, v24 offset:32")
    g("s_waitcnt lgkmcnt(0)")
    signal(g, 10)
    g("s_cmp_lg_u32 s3, 0")
    g("s_cbranch_scc1 L_done")
    lwait(g, 10, 4)
    for w in range(4):
        g(f"ds_read_b32 v{64+w}, v11 offset:{w*64}")
        g(f"ds_read_b32 v{96+w}, v11 offset:{w*64+32}")
    srd(g, 48, 38, 4096)
    g("s_waitcnt lgkmcnt(0)")
    g("v_add_f32 v64, v64, v65\nv_add_f32 v66, v66, v67\nv_add_f32 v64, v64, v66")
    g("v_add_f32 v96, v96, v97\nv_add_f32 v98, v98, v99\nv_add_f32 v96, v96, v98")
    rb(g, 64, 12)
    rb(g, 96, 12)
    g("v_mul_f32 v96, v96, v13")
    rb(g, 96, 12)
    g("v_add_f32 v96, v245, v96")
    rb(g, 96, 12)
    silu_inplace(g, 96, 14)
    rb(g, 96, 12)
    g("v_mul_f32 v64, v64, v96")
    rb(g, 64, 12)
    g("v_add_f32 v64, v244, v64")
    g("v_cvt_pk_bf16_f32 v64, v64, v64")
    g("s_mov_b64 exec, 0xff")
    g("buffer_store_short v64, v246, s[48:51], s78 offen")
    stamp_flush(g, 0)

def kdesc(g, name, vgpr):
    g.raw(".p2align 6")
    g.raw(f".amdhsa_kernel {name}")
    g.raw(f"  .amdhsa_next_free_vgpr {vgpr}")
    g.raw("  .amdhsa_next_free_sgpr 102")
    g.raw(f"  .amdhsa_accum_offset {vgpr}")
    g.raw("  .amdhsa_group_segment_fixed_size 0")
    g.raw("  .amdhsa_kernarg_size 112")
    g.raw("  .amdhsa_user_sgpr_count 2")
    g.raw("  .amdhsa_user_sgpr_kernarg_segment_ptr 1")
    g.raw("  .amdhsa_system_sgpr_workgroup_id_x 1")
    g.raw("  .amdhsa_float_denorm_mode_32 3")
    g.raw(".end_amdhsa_kernel")

def main(out):
    g = G()
    g.L = [f"; @launch kernel=k0_kernel grid=(256,1,1) block=(256,1,1) lds={K0_LDS}",
           f"; @launch kernel=k1_kernel grid=(256,1,1) block=(512,1,1) lds={LDS_TOTAL}" if not os.environ.get("ONLYK0") else ";",
           '.amdgcn_target "amdgcn-amd-amdhsa--gfx950"', ".text"]
    gen_k0(g)
    gen_kernel(g)
    g.raw('.section .rodata,"a"')
    kdesc(g, "k0_kernel", 136)
    kdesc(g, "k1_kernel", 256)
    open(out, "w").write("\n".join(g.L) + "\n")

if __name__ == "__main__":
    if len(sys.argv) > 2 and sys.argv[2] == "debug":
        DEBUG = True
    main(sys.argv[1])
```

```python
import sys, os
NAME = "recurrent_scan__compressed_kv_cla__moe_arch_mod__decode"

XN_OFF   = 0x0
QP_OFF   = 0x140000
QABS_OFF = 0x10000
FFN_OFF  = 0x40000
OPART_OFF= 0x200000
SPART_OFF= 0x600000
YPART_OFF= 0x800000
ML_OFF   = 0xA00000
FLC_OFF  = 0xA10000
STAMP_OFF= 0xC00000
WS_SIZE  = 0x1000000
DEBUG = False
SPIN_MAX = 200000

RS = 1056
R0, S1, XR, S2 = 0, 135168, 151552, 155648
LDS_TOTAL = 163840
L_WQ, L_FF, L_XN, L_QX = R0, S1, XR, S2
L_CKV, L_QA, L_P, L_MX, L_LS = R0, S1, S2, S2 + 4096, S2 + 5120
L_WO, L_WUV, L_WD, L_OL, L_HB, L_HF, L_FIN = R0, S1, S2, XR, XR + 512, XR + 1536, XR + 2048

class G:
    def __init__(self):
        self.L = []
    def __call__(self, s):
        for line in s.strip("\n").split("\n"):
            self.L.append("    " + line.strip() if not line.strip().endswith(":") else line.strip())
    def raw(self, s):
        self.L.append(s)

def srd(g, d, base, size):
    g(f"s_mov_b32 s{d}, s{base}")
    g(f"s_and_b32 s{d+1}, s{base+1}, 0xffff")
    g(f"s_mov_b32 s{d+2}, 0x{size:x}")
    g(f"s_mov_b32 s{d+3}, 0x00020000")

def dpp_reduce(g, op, v, sdst):
    for sh in (1, 2, 4, 8):
        g("s_nop 1")
        g(f"{op}_dpp v{v}, v{v}, v{v} row_shr:{sh} row_mask:0xf bank_mask:0xf")
    g("s_nop 1")
    g(f"{op}_dpp v{v}, v{v}, v{v} row_bcast:15 row_mask:0xa bank_mask:0xf")
    g("s_nop 1")
    g(f"{op}_dpp v{v}, v{v}, v{v} row_bcast:31 row_mask:0xc bank_mask:0xf")
    g("s_nop 1")
    g(f"v_readlane_b32 s{sdst}, v{v}, 63")
    g("s_nop 3")

def rb(g, v, tmp):
    g(f"v_cvt_pk_bf16_f32 v{tmp}, v{v}, v{v}")
    g(f"v_lshlrev_b32 v{v}, 16, v{tmp}")

NSTAMP = 32
def stamp(g, i):
    if DEBUG:
        g("s_memrealtime s[84:85]")
        g("s_waitcnt lgkmcnt(0)")
        g(f"v_writelane_b32 v247, s84, {i}")
HST = bool(os.environ.get("HST"))
HWG = int(os.environ.get("HWG", "0"))
def stamp_flush(g, off):
    if DEBUG and HST:
        if off != 0:
            return
        g("s_waitcnt vmcnt(0) lgkmcnt(0)")
        stamp(g, 31)
        g(f"s_cmp_lg_u32 s2, {HWG}")
        g("s_cbranch_scc1 L_done")
        g("s_sub_u32 s60, s40, 512")
        g("s_subb_u32 s61, s41, 0")
        g("s_and_b32 s61, s61, 0xffff")
        g("s_mov_b32 s62, 256")
        g("s_mov_b32 s63, 0x00020000")
        g("s_mov_b64 exec, 1")
        g("v_mov_b32 v1, 0")
        for k, i in enumerate([0, 1, 2, 3, 4, 5, 17, 6, 14, 15, 7, 8, 20, 31]):
            g(f"v_readlane_b32 s4, v247, {i}")
            g("s_nop 3")
            g("v_mov_b32 v2, s4")
            g(f"buffer_store_dword v2, v1, s[60:63], 0 offen offset:{8+4*k}")
        return
    if DEBUG:
        g("s_waitcnt vmcnt(0) lgkmcnt(0)")
        stamp(g, 31)
        g("s_memtime s[84:85]")
        g("s_waitcnt lgkmcnt(0)")
        g("s_sub_u32 s84, s84, s86")
        g("v_writelane_b32 v247, s84, 30")
        g("s_lshl_b32 s6, s2, 8")
        g(f"s_add_u32 s6, s6, {STAMP_OFF + off}")
        g("s_mov_b64 exec, 0xffffffff")
        g("v_and_b32 v1, 63, v0")
        g("v_lshlrev_b32 v1, 2, v1")
        g("buffer_store_dword v247, v1, s[64:67], s6 offen")

def layernorm_row(g, vx, vt, s0):
    f = [vt + i for i in range(8)]
    T = vt + 8
    for i in range(4):
        g(f"v_lshlrev_b32 v{f[2*i]}, 16, v{vx+i}")
        g(f"v_and_b32 v{f[2*i+1]}, 0xffff0000, v{vx+i}")
    g(f"v_add_f32 v{T}, v{f[0]}, v{f[1]}")
    for i in range(2, 8):
        g(f"v_add_f32 v{T}, v{T}, v{f[i]}")
    dpp_reduce(g, "v_add_f32", T, s0)
    g(f"v_mov_b32 v{T+1}, s{s0}")
    g(f"v_mul_f32 v{T+1}, 0x3b000000, v{T+1}")
    g(f"v_sub_f32 v{T+2}, v{f[0]}, v{T+1}")
    g(f"v_mul_f32 v{T}, v{T+2}, v{T+2}")
    for i in range(1, 8):
        g(f"v_sub_f32 v{T+2}, v{f[i]}, v{T+1}")
        g(f"v_fmac_f32 v{T}, v{T+2}, v{T+2}")
    dpp_reduce(g, "v_add_f32", T, s0)
    g(f"v_mov_b32 v{T+2}, s{s0}")
    g(f"v_mul_f32 v{T+2}, 0x3b000000, v{T+2}")
    rb(g, T + 1, T + 3)
    rb(g, T + 2, T + 3)
    g(f"v_add_f32 v{T+2}, 0x3727c5ac, v{T+2}")
    rb(g, T + 2, T + 3)
    g(f"v_sqrt_f32 v{T+2}, v{T+2}")
    g("s_nop 0")
    rb(g, T + 2, T + 3)
    g(f"v_rcp_f32 v{T+3}, v{T+2}")
    g("s_nop 0")
    for i in range(8):
        g(f"v_sub_f32 v{f[i]}, v{f[i]}, v{T+1}")
        rb(g, f[i], T + 4)
        g(f"v_mul_f32 v{T+4}, v{f[i]}, v{T+3}")
        g(f"v_fma_f32 v{T+5}, -v{T+4}, v{T+2}, v{f[i]}")
        g(f"v_fma_f32 v{f[i]}, v{T+5}, v{T+3}, v{T+4}")
        rb(g, f[i], T + 4)

def silu_inplace(g, v, t):
    g(f"v_mul_f32 v{t}, 0xbfb8aa3b, v{v}")
    g(f"v_exp_f32 v{t}, v{t}")
    g("s_nop 0")
    g(f"v_add_f32 v{t}, 1.0, v{t}")
    g(f"v_rcp_f32 v{t}, v{t}")
    g("s_nop 0")
    g(f"v_mul_f32 v{v}, v{v}, v{t}")


K0_WQ, K0_FF, K0_XN = 0, 16384, 32768
K0_LDS = 36864
def gen_k0(g):
    name = "k0_kernel"
    g.raw(f".globl {name}")
    g.raw(".p2align 8")
    g.raw(f".type {name},@function")
    g.raw(f"{name}:")
    g("s_cmp_ge_u32 s2, 256")
    g("s_cbranch_scc1 K0_done")
    if HST:
        g("s_memrealtime s[90:91]")
    g("s_load_dwordx16 s[16:31], s[0:1], 0")
    g("s_load_dwordx8 s[32:39], s[0:1], 64")
    g("s_load_dwordx4 s[40:43], s[0:1], 96")
    g("v_lshrrev_b32 v1, 6, v0")
    g("v_and_b32 v0, 0xff, v0")
    g("v_readfirstlane_b32 s3, v1")
    g("v_and_b32 v1, 63, v0")
    g("v_lshrrev_b32 v2, 4, v1")
    g("v_and_b32 v3, 15, v1")
    g("v_lshrrev_b32 v40, 2, v3")
    g("v_and_b32 v41, 3, v3")
    g("v_lshlrev_b32 v4, 4, v1")
    g("s_and_b32 s68, s2, 7")
    g("s_lshl_b32 s68, s68, 2")
    g("s_lshr_b32 s4, s2, 3")
    g("s_and_b32 s4, s4, 3")
    g("s_add_u32 s68, s68, s4")
    g("s_lshr_b32 s69, s2, 5")
    g("s_mov_b32 s4, 0x12492493")
    g("s_mul_hi_u32 s71, s2, s4")
    g("s_mul_i32 s4, s71, 14")
    g("s_sub_u32 s70, s2, s4")
    g("s_waitcnt lgkmcnt(0)")
    srd(g, 64, 42, WS_SIZE)
    srd(g, 44, 20, 512 * 8192)
    srd(g, 48, 32, 512 * 3584)
    srd(g, 52, 34, 512 * 3584)
    srd(g, 56, 16, 4096)
    g("s_lshl_b32 s4, s3, 10")
    g("buffer_load_dwordx4 v[8:11], v4, s[56:59], s4 offen")
    g("s_and_b32 s5, s3, 1")
    g("s_lshl_b32 s5, s5, 3")
    g("v_lshlrev_b32 v5, 1, v2")
    g("v_add_u32 v5, s5, v5")
    g("v_xor_b32 v5, v5, v3")
    g("v_lshlrev_b32 v5, 4, v5")
    g("v_lshl_add_u32 v6, v2, 13, v5")
    g("s_lshl_b32 s6, s68, 8")
    g("s_lshl_b32 s7, s69, 19")
    g("s_add_u32 s6, s6, s7")
    g("s_lshl_b32 s7, s3, 15")
    g("s_add_u32 s6, s6, s7")
    g("s_lshl_b32 s8, s3, 10")
    for n in range(4):
        g("s_mov_b32 m0, s8")
        g("s_add_u32 s8, s8, 4096")
        g("buffer_load_dwordx4 v6, s[44:47], s6 offen nt lds")
        g("s_add_u32 s6, s6, 131072")
    g("s_cmp_ge_u32 s2, 224")
    g("s_cbranch_scc1 K0_noffn")
    g("s_mov_b32 s8, 3584")
    g("v_mul_lo_u32 v12, v2, s8")
    g("v_add_u32 v12, v12, v5")
    g("s_lshl_b32 s7, s70, 8")
    g("s_lshl_b32 s9, s71, 5")
    g("s_lshl_b32 s10, s3, 2")
    g("s_add_u32 s9, s9, s10")
    g("s_mul_i32 s9, s9, 3584")
    g("s_add_u32 s7, s7, s9")
    g("s_lshl_b32 s8, s3, 10")
    g(f"s_add_u32 s8, s8, {K0_FF}")
    for mat in range(2):
        for ii in range(2):
            g(f"s_add_u32 s10, s8, {mat*8192 + ii*4096}")
            g("s_mov_b32 m0, s10")
            g(f"s_add_u32 s9, s7, {ii*16*3584}")
            g(f"buffer_load_dwordx4 v12, s[{48+4*mat}:{51+4*mat}], s9 offen nt lds")
    g("K0_noffn:")
    if os.environ.get("PFCKV"):
        srd(g, 60, 18, 16 << 20)
        g("s_lshr_b32 s74, s2, 3")
        g("s_and_b32 s74, s74, 1")
        g("s_and_b32 s4, s2, 7")
        g("s_lshr_b32 s5, s2, 4")
        g("s_lshl_b32 s5, s5, 3")
        g("s_or_b32 s4, s4, s5")
        g("s_lshl_b32 s7, s4, 17")
        g("s_lshl_b32 s8, s74, 16")
        g("s_add_u32 s7, s7, s8")
        g("s_lshl_b32 s8, s3, 14")
        g("s_add_u32 s7, s7, s8")
        for n in range(16):
            g(f"buffer_load_dwordx4 v[{64+4*(n&3)}:{67+4*(n&3)}], v4, s[60:63], s7 offen" + os.environ["PFCKV"].replace("_", " "))
            g("s_add_u32 s7, s7, 1024")
    g("s_waitcnt vmcnt(4)")
    layernorm_row(g, 8, 20, 72)
    for i in range(4):
        g(f"v_cvt_pk_bf16_f32 v{36+i}, v{20+2*i}, v{21+2*i}")
    g("v_lshrrev_b32 v14, 2, v1")
    g("v_lshlrev_b32 v14, 6, v14")
    g("v_and_b32 v15, 1, v1")
    g("v_lshl_add_u32 v14, v15, 5, v14")
    g("v_bfe_u32 v15, v1, 1, 1")
    g("v_lshl_add_u32 v14, v15, 3, v14")
    g("s_lshl_b32 s4, s3, 10")
    g(f"s_add_u32 s4, s4, {K0_XN}")
    g("v_add_u32 v14, s4, v14")
    g("ds_write_b64 v14, v[36:37]")
    g("ds_write_b64 v14, v[38:39] offset:16")
    g("s_cmp_lg_u32 s2, 0")
    g("s_cbranch_scc1 K0_noxn")
    g("s_lshl_b32 s4, s3, 10")
    g("buffer_store_dwordx4 v[36:39], v4, s[64:67], s4 offen")
    g("K0_noxn:")
    g("v_and_b32 v42, 1, v2")
    g("v_lshl_add_u32 v42, v42, 2, v40")
    g("v_lshl_add_u32 v43, v2, 2, v40")
    g("v_lshlrev_b32 v43, 8, v43")
    g("v_lshl_add_u32 v43, v41, 3, v43")
    g("s_lshl_b32 s4, s3, 1")
    g("v_xor_b32 v44, s4, v42")
    g("v_lshl_add_u32 v44, v44, 5, v43")
    g("s_add_u32 s4, s4, 1")
    g("v_xor_b32 v45, s4, v42")
    g("v_lshl_add_u32 v45, v45, 5, v43")
    g("v_lshlrev_b32 v48, 10, v41")
    g("v_lshl_add_u32 v48, v2, 4, v48")
    g(f"v_add_u32 v48, {K0_XN}, v48")
    g("s_waitcnt vmcnt(0) lgkmcnt(0)")
    g("s_barrier")
    g("v_mov_b32 v16, -1\nv_mov_b32 v17, -1\nv_mov_b32 v18, -1\nv_mov_b32 v19, -1")
    g("v_lshlrev_b32 v13, 4, v0")
    g("s_lshl_b32 s7, s2, 15")
    g(f"s_add_u32 s7, s7, {OPART_OFF}")
    g("s_cmp_lg_u32 s3, 0")
    g("s_cbranch_scc1 K0_noml")
    g("s_lshl_b32 s7, s2, 7")
    g(f"s_add_u32 s8, s7, {ML_OFF}")
    g("s_mov_b64 exec, 0xff")
    g("buffer_store_dwordx4 v[16:19], v13, s[64:67], s8 offen")
    g("v_mov_b32 v20, 0\nv_mov_b32 v21, 0\nv_mov_b32 v22, 0\nv_mov_b32 v23, 0")
    g(f"s_add_u32 s8, s7, {FLC_OFF}")
    g("buffer_store_dwordx4 v[20:23], v13, s[64:67], s8 offen")
    g("s_mov_b64 exec, 0xffffffff")
    g("s_lshl_b32 s7, s2, 9")
    g(f"s_add_u32 s8, s7, {QABS_OFF}")
    g("buffer_store_dwordx4 v[16:19], v13, s[64:67], s8 offen")
    g("s_mov_b64 exec, -1")
    g("K0_noml:")
    g("s_lshl_b32 s4, s69, 7")
    g("v_add_u32 v52, s4, v48")
    g("ds_read_b128 v[96:99], v52")
    g("ds_read_b128 v[100:103], v52 offset:64")
    for d in range(2):
        for s_ in range(2):
            for half in range(2):
                rr = 104 + (d * 2 + s_) * 4 + half * 2
                g(f"ds_read_b64_tr_b16 v[{rr}:{rr+1}], v{44+d} offset:{K0_WQ + s_*8192 + half*4096}")
    g("s_waitcnt lgkmcnt(0)")
    for d in range(2):
        g(f"v_mfma_f32_16x16x32_bf16 v[{80+4*d}:{83+4*d}], v[{104+8*d}:{107+8*d}], v[96:99], 0")
        g(f"v_mfma_f32_16x16x32_bf16 v[{80+4*d}:{83+4*d}], v[{108+8*d}:{111+8*d}], v[100:103], v[{80+4*d}:{83+4*d}]")
    g("v_lshlrev_b32 v51, 9, v41")
    g("v_lshl_add_u32 v51, v2, 4, v51")
    g("s_lshl_b32 s4, s68, 14")
    g("s_lshl_b32 s5, s69, 11")
    g("s_add_u32 s4, s4, s5")
    g("s_lshl_b32 s5, s3, 7")
    g("s_add_u32 s4, s4, s5")
    g(f"s_add_u32 s4, s4, {QP_OFF}")
    g("s_nop 7")
    g("v_cmp_gt_u32 vcc, 4, v3")
    g("s_and_saveexec_b64 s[10:11], vcc")
    for d in range(2):
        g(f"buffer_store_dwordx4 v[{80+4*d}:{83+4*d}], v51, s[64:67], s4 offen offset:{64*d}")
    g("s_mov_b64 exec, s[10:11]")
    g("s_cmp_ge_u32 s2, 224")
    g("s_cbranch_scc1 K0_done")
    g("s_lshl_b32 s4, s71, 6")
    g("v_add_u32 v52, s4, v48")
    g("ds_read_b128 v[96:99], v52")
    for mat in range(2):
        for d in range(2):
            for half in range(2):
                rr = 100 + (mat * 2 + d) * 4 + half * 2
                g(f"ds_read_b64_tr_b16 v[{rr}:{rr+1}], v{44+d} offset:{K0_FF + mat*8192 + half*4096}")
    g("s_waitcnt lgkmcnt(0)")
    for mat in range(2):
        for d in range(2):
            q = mat * 2 + d
            g(f"v_mfma_f32_16x16x32_bf16 v[{120+4*q}:{123+4*q}], v[{100+4*q}:{103+4*q}], v[96:99], 0")
    g("s_mov_b32 s4, 7168")
    g("v_mul_lo_u32 v54, v41, s4")
    g("v_lshl_add_u32 v54, v2, 4, v54")
    g("s_mul_i32 s4, s71, 57344")
    g("s_lshl_b32 s5, s70, 9")
    g("s_add_u32 s4, s4, s5")
    g("s_lshl_b32 s5, s3, 7")
    g("s_add_u32 s4, s4, s5")
    g(f"s_add_u32 s4, s4, {FFN_OFF}")
    g("s_nop 7")
    g("v_cmp_gt_u32 vcc, 4, v3")
    g("s_and_saveexec_b64 s[10:11], vcc")
    for mat in range(2):
        g(f"s_add_u32 s5, s4, {mat*28672}")
        for d in range(2):
            q = mat * 2 + d
            g(f"buffer_store_dwordx4 v[{120+4*q}:{123+4*q}], v54, s[64:67], s5 offen offset:{64*d}")
    g("s_mov_b64 exec, s[10:11]")
    if HST:
        g("K0_hst:")
        g(f"s_cmp_lg_u32 s2, {HWG}")
        g("s_cbranch_scc1 K0_done")
        g("s_cmp_lg_u32 s3, 0")
        g("s_cbranch_scc1 K0_done")
        g("s_waitcnt vmcnt(0)")
        g("s_memrealtime s[92:93]")
        srd(g, 60, 40, 256)
        g("s_waitcnt lgkmcnt(0)")
        g("s_mov_b64 exec, 1")
        g("v_mov_b32 v1, 0")
        g("v_mov_b32 v2, s90")
        g("v_mov_b32 v3, s92")
        g("buffer_store_dwordx2 v[2:3], v1, s[60:63], 0 offen")
    g("K0_done:")
    g("s_endpgm")


L_CNT = XR + 1792
_lbl = [0]
def signal(g, idx):
    g("s_mov_b64 exec, 1")
    g(f"ds_add_u32 v250, v251 offset:{4*idx}")
    g("s_mov_b64 exec, -1")
def lwait(g, idx, cnt, sleep=0):
    _lbl[0] += 1
    L = f"LW{_lbl[0]}"
    g(f"{L}:")
    if sleep:
        g(f"s_sleep {sleep}")
    g(f"ds_read_b32 v252, v250 offset:{4*idx}")
    g("s_waitcnt lgkmcnt(0)")
    g("v_readfirstlane_b32 s79, v252")
    g(f"s_cmp_lt_u32 s79, {cnt}")
    g(f"s_cbranch_scc1 {L}")

def gen_kernel(g):
    name = "k1_kernel"
    g.raw(f".globl {name}")
    g.raw(".p2align 8")
    g.raw(f".type {name},@function")
    g.raw(f"{name}:")
    g("s_cmp_ge_u32 s2, 256")
    g("s_cbranch_scc1 L_done")
    stamp(g, 0)
    if DEBUG:
        g("s_memtime s[86:87]")
    g("s_load_dwordx16 s[16:31], s[0:1], 0")
    g("s_load_dwordx8 s[32:39], s[0:1], 64")
    g("s_load_dwordx4 s[40:43], s[0:1], 96")
    g("v_lshrrev_b32 v1, 6, v0")
    g("v_and_b32 v0, 0xff, v0")
    g("v_readfirstlane_b32 s77, v1")
    g("v_and_b32 v1, 63, v0")
    g("v_lshrrev_b32 v2, 4, v1")
    g("v_and_b32 v3, 15, v1")
    g("v_lshrrev_b32 v40, 2, v3")
    g("v_and_b32 v41, 3, v3")
    g("v_lshlrev_b32 v4, 4, v1")
    g(f"v_mov_b32 v250, {L_CNT}")
    g("v_mov_b32 v251, 1")
    g("v_lshlrev_b32 v252, 2, v1")
    g(f"v_add_u32 v252, {L_CNT}, v252")
    g("v_mov_b32 v253, 0")
    g("ds_write_b32 v252, v253")
    g("s_and_b32 s3, s77, 3")
    g("s_lshr_b32 s77, s77, 2")
    g("s_and_b32 s68, s2, 7")
    g("s_lshl_b32 s68, s68, 2")
    g("s_lshr_b32 s4, s2, 3")
    g("s_and_b32 s4, s4, 3")
    g("s_add_u32 s68, s68, s4")
    g("s_lshr_b32 s69, s2, 5")
    g("s_lshr_b32 s74, s2, 3")
    g("s_and_b32 s74, s74, 1")
    g("s_and_b32 s4, s2, 7")
    g("s_lshr_b32 s5, s2, 4")
    g("s_lshl_b32 s5, s5, 3")
    g("s_or_b32 s4, s4, s5")
    g("s_lshr_b32 s75, s4, 5")
    g("s_and_b32 s76, s4, 31")
    g("s_waitcnt lgkmcnt(0)")
    g("s_barrier")
    srd(g, 64, 42, WS_SIZE)
    g("s_cmp_eq_u32 s77, 0")
    g("s_cbranch_scc0 L_loader")
    gen_compute(g)
    g("s_branch L_done")
    g("L_loader:")
    gen_loader(g)
    g("L_done:")
    g("s_endpgm")

def gen_loader(g):
    srd(g, 44, 18, 16 << 20)
    g("s_lshl_b32 s7, s75, 22")
    g("s_lshl_b32 s8, s76, 17")
    g("s_add_u32 s7, s7, s8")
    g("s_lshl_b32 s8, s3, 15")
    g("s_add_u32 s7, s7, s8")
    g(f"s_mul_i32 s8, s3, {32*RS}")
    for n in range(32):
        g("s_mov_b32 m0, s8")
        g(f"s_add_u32 s8, s8, {RS}")
        g("buffer_load_dwordx4 v4, s[44:47], s7 offen nt lds")
        g("s_add_u32 s7, s7, 1024")
    stamp(g, 4)
    g("s_and_b32 s5, s3, 1")
    g("s_lshl_b32 s5, s5, 3")
    g("v_lshlrev_b32 v5, 1, v2")
    g("v_add_u32 v5, s5, v5")
    g("v_xor_b32 v5, v5, v3")
    g("v_lshlrev_b32 v5, 4, v5")
    g("v_lshl_add_u32 v6, v2, 13, v5")
    srd(g, 48, 26, 32 * 131072)
    g("s_lshl_b32 s6, s68, 17")
    g("s_lshl_b32 s7, s3, 15")
    g("s_add_u32 s6, s6, s7")
    NW1 = int(os.environ.get("NW1", "0"))
    def wo_loads(lo, hi, tag):
        for jj in range(8):
            g(f"s_cmp_eq_u32 s69, {jj}")
            g(f"s_cbranch_scc1 LL_wo{tag}{jj}")
        for jj in range(8):
            g(f"LL_wo{tag}{jj}:")
            for n in range(lo, hi):
                r = (n + 4 * jj) & 31
                g(f"s_add_u32 s7, s6, {r*1024}")
                g(f"buffer_load_dwordx4 v[{64+4*r}:{67+4*r}], v4, s[48:51], s7 offen nt")
            g(f"s_branch LL_wod{tag}")
        g(f"LL_wod{tag}:")
    if NW1:
        wo_loads(0, NW1, "a")
    g(f"s_waitcnt vmcnt({NW1})")
    signal(g, 1)
    stamp(g, 5)
    wo_loads(NW1, 32, "b")
    srd(g, 44, 24, 512 * 8192)
    g("s_lshl_b32 s6, s68, 8")
    g("s_lshl_b32 s7, s69, 19")
    g("s_add_u32 s6, s6, s7")
    g("s_lshl_b32 s7, s3, 15")
    g("s_add_u32 s6, s6, s7")
    for n in range(4):
        g(f"buffer_load_dwordx4 v[{192+4*n}:{195+4*n}], v6, s[44:47], s6 offen nt")
        g("s_add_u32 s6, s6, 131072")
    srd(g, 52, 36, 1792 * 1024)
    g("s_lshl_b32 s4, s2, 3")
    g("s_lshl_b32 s5, s3, 1")
    g("s_add_u32 s4, s4, s5")
    g("s_lshl_b32 s4, s4, 10")
    for i in range(2):
        g(f"buffer_load_dwordx4 v[{208+4*i}:{211+4*i}], v4, s[52:55], s4 offen offset:{1024*i} nt")
    stamp(g, 6)
    g("s_waitcnt vmcnt(0)")
    stamp(g, 7)
    lwait(g, 3, 4, 2)
    g("s_lshl_b32 s8, s3, 10")
    g(f"s_add_u32 s8, s8, {L_WUV}")
    g("v_add_u32 v7, s8, v4")
    for n in range(4):
        g(f"ds_write_b128 v7, v[{192+4*n}:{195+4*n}] offset:{n*4096}")
    lwait(g, 11, 4, 2)
    g(f"s_mul_i32 s8, s3, {32*RS}")
    g("v_add_u32 v7, s8, v4")
    for n in range(32):
        g(f"ds_write_b128 v7, v[{64+4*n}:{67+4*n}] offset:{n*RS}")
    g("s_lshl_b32 s8, s3, 11")
    g(f"s_add_u32 s8, s8, {L_WD}")
    g("v_add_u32 v7, s8, v4")
    for i in range(2):
        g(f"ds_write_b128 v7, v[{208+4*i}:{211+4*i}] offset:{1024*i}")
    g("s_waitcnt lgkmcnt(0)")
    signal(g, 6)
    stamp(g, 8)
    if DEBUG:
        g("s_cmp_lg_u32 s3, 0")
        g("s_cbranch_scc1 L_done")
    stamp_flush(g, 128)

def gen_compute(g):
    srd(g, 48, 22, 512 * 8192)
    srd(g, 52, 16, 4096)
    g("v_lshlrev_b32 v5, 3, v1")
    g("s_lshl_b32 s4, s68, 14")
    g("s_lshl_b32 s5, s3, 9")
    g("s_add_u32 s4, s4, s5")
    g(f"s_add_u32 s4, s4, {QP_OFF}")
    for p in range(8):
        g(f"buffer_load_dwordx2 v[{96+2*p}:{97+2*p}], v5, s[64:67], s4 offen offset:{2048*p if p < 2 else 0}" if p < 2 else f"buffer_load_dwordx2 v[{96+2*p}:{97+2*p}], v5, s[64:67], s5 offen offset:{2048*(p&1)}")
        if p & 1:
            g(f"s_add_u32 s5, s4, {2048*(p+1)}")
    g("s_lshl_b32 s6, s68, 8")
    g("s_lshl_b32 s7, s69, 6")
    g("s_lshl_b32 s8, s3, 4")
    g("s_add_u32 s7, s7, s8")
    g("v_add_u32 v7, s7, v3")
    g("v_lshlrev_b32 v7, 13, v7")
    g("v_lshl_add_u32 v7, v2, 4, v7")
    g("v_add_u32 v7, s6, v7")
    for ks in range(4):
        g(f"buffer_load_dwordx4 v[{64+4*ks}:{67+4*ks}], v7, s[48:51], 0 offen offset:{64*ks} nt")
    g("v_and_b32 v42, 1, v2")
    g("v_lshl_add_u32 v42, v42, 2, v40")
    g("v_lshl_add_u32 v43, v2, 2, v40")
    g("v_lshlrev_b32 v43, 8, v43")
    g("v_lshl_add_u32 v43, v41, 3, v43")
    g("s_lshl_b32 s4, s3, 8")
    g(f"s_add_u32 s4, s4, {L_QX}")
    g("v_lshlrev_b32 v49, 2, v1")
    g("v_add_u32 v49, s4, v49")
    g("v_lshlrev_b32 v50, 8, v41")
    g("v_lshl_add_u32 v50, v2, 4, v50")
    g(f"v_add_u32 v50, {L_QX}, v50")
    g("s_waitcnt vmcnt(4)")
    stamp(g, 1)
    for p in range(1, 8):
        g(f"v_add_f32 v96, v96, v{96+2*p}")
        g(f"v_add_f32 v97, v97, v{97+2*p}")
    g("v_cvt_pk_bf16_f32 v88, v96, v97")
    g("ds_write_b32 v49, v88")
    g("s_waitcnt lgkmcnt(0)")
    signal(g, 0)
    lwait(g, 0, 4)
    for ks in range(4):
        g(f"ds_read_b128 v[{96+4*ks}:{99+4*ks}], v50 offset:{64*ks}")
    g("s_waitcnt vmcnt(0) lgkmcnt(0)")
    g("v_mfma_f32_16x16x32_bf16 v[80:83], v[64:67], v[96:99], 0")
    for ks in range(1, 4):
        g(f"v_mfma_f32_16x16x32_bf16 v[80:83], v[{64+4*ks}:{67+4*ks}], v[{96+4*ks}:{99+4*ks}], v[80:83]")
    g("v_lshlrev_b32 v51, 15, v41")
    g("v_lshl_add_u32 v51, v2, 3, v51")
    g("s_lshl_b32 s4, s68, 10")
    g("s_lshl_b32 s5, s69, 7")
    g("s_add_u32 s4, s4, s5")
    g("s_lshl_b32 s5, s3, 5")
    g("s_add_u32 s4, s4, s5")
    g(f"s_add_u32 s4, s4, {QABS_OFF}")
    g("s_nop 7")
    g("v_cvt_pk_bf16_f32 v88, v80, v81")
    g("v_cvt_pk_bf16_f32 v89, v82, v83")
    g("v_cmp_gt_u32 vcc, 4, v3")
    g("s_and_saveexec_b64 s[10:11], vcc")
    g("buffer_store_dwordx2 v[88:89], v51, s[64:67], s4 offen sc1")
    g("s_mov_b64 exec, s[10:11]")
    stamp(g, 2)
    g("s_cmp_ge_u32 s2, 224")
    g("s_cbranch_scc1 LC_nf1")
    g("v_and_b32 v7, 7, v1")
    g("v_lshlrev_b32 v7, 2, v7")
    g("v_lshrrev_b32 v30, 3, v1")
    g("s_mov_b32 s4, 7168")
    g("v_mul_lo_u32 v30, v30, s4")
    g("v_add_u32 v7, v7, v30")
    g("s_mul_i32 s4, s3, 229376")
    g("s_lshl_b32 s5, s2, 5")
    g("s_add_u32 s4, s4, s5")
    g(f"s_add_u32 s4, s4, {FFN_OFF}")
    for i in range(4):
        g(f"buffer_load_dword v{232+i}, v7, s[64:67], s4 offen")
        g("s_add_u32 s4, s4, 57344")
    g("LC_nf1:")
    srd(g, 48, 30, 1024)
    g("s_lshr_b32 s4, s2, 6")
    g("s_lshl_b32 s4, s4, 10")
    g("buffer_load_dwordx4 v[236:239], v4, s[64:67], s4 offen")
    g("buffer_load_dwordx4 v[240:243], v4, s[48:51], 0 offen")
    g("v_and_b32 v246, 7, v1")
    g("v_lshlrev_b32 v246, 1, v246")
    g("s_and_b32 s5, s2, 63")
    g("s_lshl_b32 s5, s5, 4")
    g("s_add_u32 s78, s5, s4")
    g("buffer_load_ushort v244, v246, s[52:55], s78 offen")
    g("buffer_load_ushort v245, v246, s[64:67], s78 offen")
    g("s_lshl_b32 s6, s3, 2")
    for i in range(4):
        g(f"s_add_u32 s7, s6, {i}")
        g(f"v_xor_b32 v{24+i}, s7, v1")
        g(f"v_lshlrev_b32 v{24+i}, 4, v{24+i}")
        g("s_lshl_b32 s7, s7, 10")
        g(f"s_add_u32 s7, s7, {L_QA}")
        g(f"v_add_u32 v{24+i}, s7, v{24+i}")
    g("s_lshl_b32 s5, s75, 5")
    g("s_lshl_b32 s6, s74, 4")
    g("s_add_u32 s5, s5, s6")
    g("s_lshl_b32 s6, s3, 2")
    g("s_add_u32 s5, s5, s6")
    g("s_lshl_b32 s5, s5, 10")
    g(f"s_add_u32 s5, s5, {QABS_OFF}")
    g("s_mov_b32 s82, 0")
    if os.environ.get("LATEPOLL"):
        lwait(g, 1, 4, 2)
    else:
        g("s_sleep 16")
    g("LC_pollA:")
    g("s_sleep 8" if not os.environ.get("LATEPOLL") else "s_sleep 1")
    for i in range(4):
        g(f"buffer_load_dwordx4 v[{8+4*i}:{11+4*i}], v4, s[64:67], s5 offen offset:{1024*i} sc1")
    g("s_waitcnt vmcnt(0)")
    g("v_max3_u32 v28, v8, v9, v10")
    for i in range(6):
        g(f"v_max3_u32 v28, v28, v{11+2*i}, v{12+2*i}")
    g("v_max_u32 v28, v28, v23")
    g("v_cmp_eq_u32 vcc, -1, v28")
    g("s_add_u32 s82, s82, 1")
    g(f"s_cmp_gt_u32 s82, {SPIN_MAX}")
    g("s_cbranch_scc1 LC_pollAd")
    g("s_cbranch_vccnz LC_pollA")
    g("LC_pollAd:")
    stamp(g, 3)
    for i in range(4):
        g(f"ds_write_b128 v{24+i}, v[{8+4*i}:{11+4*i}]")
    for i in range(4):
        g(f"v_add_u32 v6, {4*i}, v2")
        g("v_xor_b32 v6, v6, v3")
        g("v_lshlrev_b32 v6, 4, v6")
        g(f"v_lshl_add_u32 v{8+i}, v3, 10, v6")
        g(f"v_add_u32 v{8+i}, {L_QA}, v{8+i}")
    g("s_lshl_b32 s4, s3, 5")
    g("v_add_u32 v12, s4, v3")
    g(f"s_mov_b32 s4, {RS}")
    g("v_mul_lo_u32 v12, v12, s4")
    g("v_lshl_add_u32 v12, v2, 4, v12")
    for i in range(8):
        g(f"v_mov_b32 v{48+i}, 0")
    g("s_waitcnt lgkmcnt(0)")
    signal(g, 2)
    lwait(g, 2, 4)
    for s_ in range(16):
        g(f"ds_read_b128 v[{64+4*s_}:{67+4*s_}], v{8+(s_&3)} offset:{(s_>>2)*256}")
    lwait(g, 1, 4, 1)
    stamp(g, 4)
    def sissue(grp):
        e = grp & 1
        for kk in range(4):
            s_ = grp * 4 + kk
            for T in range(2):
                rr = 128 + e * 32 + (kk * 2 + T) * 4
                g(f"ds_read_b128 v[{rr}:{rr+3}], v12 offset:{T*16*RS + s_*64}")
    def scompute(grp):
        e = grp & 1
        for kk in range(4):
            s_ = grp * 4 + kk
            for T in range(2):
                rr = 128 + e * 32 + (kk * 2 + T) * 4
                g(f"v_mfma_f32_16x16x32_bf16 v[{48+4*T}:{51+4*T}], v[{rr}:{rr+3}], v[{64+4*s_}:{67+4*s_}], v[{48+4*T}:{51+4*T}]")
    sissue(0)
    for grp in range(4):
        if grp < 3:
            sissue(grp + 1)
            g("s_waitcnt lgkmcnt(8)")
        else:
            g("s_waitcnt lgkmcnt(0)")
        scompute(grp)
    g("v_lshlrev_b32 v13, 6, v3")
    g("v_lshl_add_u32 v14, v2, 2, v13")
    g("s_lshl_b32 s4, s3, 4")
    g("v_add_u32 v14, s4, v14")
    g(f"v_add_u32 v15, {L_MX}, v14")
    g(f"v_add_u32 v16, {L_MX}, v13")
    g("s_nop 3")
    for i in range(8):
        rb(g, 48 + i, 56)
        g(f"v_mul_f32 v{48+i}, 0x3db504f3, v{48+i}")
        rb(g, 48 + i, 56)
    g("v_max3_f32 v56, v48, v49, v50")
    g("v_max3_f32 v56, v56, v51, v52")
    g("v_max3_f32 v56, v56, v53, v54")
    g("v_max_f32 v56, v56, v55")
    g("ds_write_b32 v15, v56")
    g("s_waitcnt lgkmcnt(0)")
    signal(g, 3)
    lwait(g, 3, 4)
    for i in range(4):
        g(f"ds_read_b128 v[{128+4*i}:{131+4*i}], v16 offset:{16*i}")
    g("s_waitcnt lgkmcnt(0)")
    g("v_max3_f32 v57, v128, v129, v130")
    for i in range(6):
        g(f"v_max3_f32 v57, v57, v{131+2*i}, v{132+2*i}")
    g("v_max_f32 v57, v57, v143")
    for i in range(8):
        g(f"v_sub_f32 v{48+i}, v{48+i}, v57")
        g(f"v_mul_f32 v{48+i}, 0x3fb8aa3b, v{48+i}")
        g(f"v_exp_f32 v{48+i}, v{48+i}")
    g("s_nop 0")
    g("v_add_f32 v58, v48, v49")
    for i in range(2, 8):
        g(f"v_add_f32 v58, v58, v{48+i}")
    for i in range(4):
        g(f"v_cvt_pk_bf16_f32 v{60+i}, v{48+2*i}, v{49+2*i}")
    g(f"v_add_u32 v15, {L_LS}, v14")
    g("ds_write_b32 v15, v58")
    g("s_lshl_b32 s4, s3, 10")
    g(f"s_add_u32 s4, s4, {L_P}")
    g("v_add_u32 v17, s4, v4")
    g("ds_write_b128 v17, v[60:63]")
    g(f"v_add_u32 v17, {L_P}, v4")
    g("v_lshl_add_u32 v18, v2, 2, v40")
    g(f"s_mov_b32 s4, {RS}")
    g("v_mul_lo_u32 v18, v18, s4")
    g("s_lshl_b32 s4, s3, 8")
    g("v_add_u32 v18, s4, v18")
    g("v_lshl_add_u32 v20, v41, 4, v18")
    g(f"v_add_u32 v21, {64*RS}, v20")
    g("v_lshl_add_u32 v18, v41, 3, v18")
    g(f"v_add_u32 v19, {64*RS}, v18")
    g("s_waitcnt lgkmcnt(0)")
    signal(g, 4)
    lwait(g, 4, 4)
    stamp(g, 5)
    for u in range(4):
        g(f"ds_read_b128 v[{64+4*u}:{67+4*u}], v17 offset:{u*1024}")
    g(f"v_add_u32 v16, {L_LS}, v13")
    for i in range(4):
        g(f"ds_read_b128 v[{80+4*i}:{83+4*i}], v16 offset:{16*i}")
    def tr_pipeline(bfrag, accbase, tmpbase, areg, coloff):
        def pissue(ct):
            e = ct & 1
            for u in range(4):
                for half in range(2):
                    rr = tmpbase + e * 16 + u * 4 + half * 2
                    off = (32 * (u & 1) + 16 * half) * RS + coloff(ct)
                    g(f"ds_read_b64_tr_b16 v[{rr}:{rr+1}], v{areg + (u>>1)} offset:{off}")
        def pcompute(ct):
            e = ct & 1
            for u in range(4):
                rr = tmpbase + e * 16 + u * 4
                c = "0" if u == 0 else f"v[{accbase+4*ct}:{accbase+3+4*ct}]"
                g(f"v_mfma_f32_16x16x32_bf16 v[{accbase+4*ct}:{accbase+3+4*ct}], v[{rr}:{rr+3}], v[{bfrag+4*u}:{bfrag+3+4*u}], {c}")
        pissue(0)
        for ct in range(8):
            if ct < 7:
                pissue(ct + 1)
                g("s_waitcnt lgkmcnt(8)")
            else:
                g("s_waitcnt lgkmcnt(0)")
            pcompute(ct)
    tr_pipeline(64, 192, 128, 20, lambda ct: (ct >> 1) * 64 + (ct & 1) * 8)
    signal(g, 11)
    g("v_add_f32 v59, v80, v81")
    for i in range(2, 16):
        g(f"v_add_f32 v59, v59, v{80+i}")
    g("v_mov_b32 v58, v57")
    g("v_lshlrev_b32 v22, 17, v3")
    g("v_lshl_add_u32 v22, v2, 4, v22")
    g("s_lshl_b32 s4, s74, 21")
    g("s_lshl_b32 s5, s3, 15")
    g("s_add_u32 s4, s4, s5")
    g("s_lshl_b32 s5, s75, 12")
    g("s_add_u32 s4, s4, s5")
    g("s_lshl_b32 s5, s76, 7")
    g("s_add_u32 s4, s4, s5")
    g(f"s_add_u32 s4, s4, {OPART_OFF}")
    g("s_add_u32 s5, s4, 16384")
    for p in range(4):
        for q in range(4):
            g(f"v_cvt_pk_bf16_f32 v{128+4*p+q}, v{192+8*p+2*q}, v{193+8*p+2*q}")
        g(f"buffer_store_dwordx4 v[{128+4*p}:{131+4*p}], v22, s[64:67], s{4+(p>>1)} offen offset:{(p&1)*64} sc1")
    stamp(g, 17)
    g("s_cmp_ge_u32 s2, 224")
    g("s_cbranch_scc1 LC_nf2")
    g("v_add_f32 v232, v232, v233")
    g("v_add_f32 v234, v234, v235")
    g("v_add_f32 v232, v232, v234")
    g("v_lshlrev_b32 v22, 2, v0")
    g(f"v_add_u32 v22, {L_HB}, v22")
    g("ds_write_b32 v22, v232")
    g("LC_nf2:")
    g("s_waitcnt vmcnt(0) lgkmcnt(0)")
    signal(g, 5)
    g("s_cmp_lg_u32 s3, 0")
    g("s_cbranch_scc1 LC_noml")
    lwait(g, 5, 4)
    g("v_lshlrev_b32 v21, 10, v3")
    g("s_lshl_b32 s4, s74, 14")
    g("s_lshl_b32 s5, s75, 8")
    g("s_add_u32 s4, s4, s5")
    g("s_lshl_b32 s5, s76, 3")
    g("s_add_u32 s4, s4, s5")
    g(f"s_add_u32 s4, s4, {ML_OFF}")
    g("s_mov_b64 exec, 0xffff")
    g("buffer_store_dwordx2 v[58:59], v21, s[64:67], s4 offen sc1")
    g("s_mov_b64 exec, -1")
    g("LC_noml:")
    stamp(g, 6)
    lwait(g, 5, 4)
    lwait(g, 6, 4, 1)
    stamp(g, 18)
    g("v_lshlrev_b32 v36, 11, v41")
    g("v_lshl_add_u32 v36, v2, 4, v36")
    g("s_cmp_ge_u32 s2, 224")
    g("s_cbranch_scc1 LC_nf3")
    g("s_lshl_b32 s7, s2, 13")
    g("s_lshl_b32 s5, s3, 9")
    g("s_add_u32 s7, s7, s5")
    g(f"s_add_u32 s7, s7, {YPART_OFF}")
    g("v_and_b32 v22, 31, v1")
    g("v_lshlrev_b32 v22, 2, v22")
    g(f"v_add_u32 v22, {L_HB}, v22")
    for w in range(4):
        g(f"ds_read_b32 v{24+w}, v22 offset:{w*256}")
        g(f"ds_read_b32 v{28+w}, v22 offset:{w*256+128}")
    g("v_lshlrev_b32 v23, 10, v42")
    g("v_lshl_add_u32 v23, v41, 3, v23")
    g("s_lshl_b32 s4, s3, 8")
    g(f"s_add_u32 s4, s4, {L_WD}")
    g("v_add_u32 v23, s4, v23")
    for mt in range(8):
        g(f"ds_read_b64_tr_b16 v[{128+4*mt}:{129+4*mt}], v23 offset:{mt*32}")
    g("s_waitcnt lgkmcnt(8)")
    g("v_add_f32 v24, v24, v25\nv_add_f32 v26, v26, v27\nv_add_f32 v24, v24, v26")
    g("v_add_f32 v28, v28, v29\nv_add_f32 v30, v30, v31\nv_add_f32 v28, v28, v30")
    rb(g, 24, 25)
    rb(g, 28, 25)
    silu_inplace(g, 24, 25)
    rb(g, 24, 25)
    g("v_mul_f32 v24, v24, v28")
    g("v_cvt_pk_bf16_f32 v24, v24, v24")
    g("v_and_b32 v22, 31, v1")
    g("v_lshlrev_b32 v22, 1, v22")
    g("s_lshl_b32 s4, s3, 6")
    g(f"s_add_u32 s4, s4, {L_HF}")
    g("v_add_u32 v22, s4, v22")
    g("ds_write_b16 v22, v24")
    g("v_lshlrev_b32 v22, 4, v41")
    g("v_and_b32 v23, 1, v2")
    g("v_lshl_add_u32 v22, v23, 3, v22")
    g("v_add_u32 v22, s4, v22")
    g("s_waitcnt lgkmcnt(0)")
    g("ds_read_b64 v[32:33], v22")
    g("v_mov_b32 v34, 0\nv_mov_b32 v35, 0")
    for mt in range(8):
        g(f"v_mov_b32 v{130+4*mt}, v{128+4*mt}")
        g(f"v_mov_b32 v{131+4*mt}, v{129+4*mt}")
    g("v_cmp_gt_u32 vcc, 2, v2")
    g("s_waitcnt lgkmcnt(0)")
    g("v_cndmask_b32 v32, 0, v32, vcc")
    g("v_cndmask_b32 v33, 0, v33, vcc")
    g("s_nop 1")
    for mt in range(8):
        g(f"v_mfma_f32_16x16x32_bf16 v[{160+4*mt}:{163+4*mt}], v[{128+4*mt}:{131+4*mt}], v[32:35], 0")
    g("s_nop 7")
    g("v_cmp_gt_u32 vcc, 4, v3")
    g("s_and_saveexec_b64 s[10:11], vcc")
    for mt in range(8):
        g(f"buffer_store_dwordx4 v[{160+4*mt}:{163+4*mt}], v36, s[64:67], s7 offen offset:{mt*64} sc1")
    g("s_mov_b64 exec, s[10:11]")
    g("LC_nf3:")
    stamp(g, 19)
    g("v_and_b32 v5, 31, v1")
    g("v_lshlrev_b32 v5, 3, v5")
    g("s_lshl_b32 s80, s68, 10")
    g("s_lshl_b32 s5, s3, 8")
    g("s_add_u32 s80, s80, s5")
    g(f"s_add_u32 s80, s80, {ML_OFF}")
    g("v_lshlrev_b32 v6, 1, v1")
    g("s_lshl_b32 s81, s68, 17")
    g("s_lshl_b32 s5, s69, 14")
    g("s_add_u32 s81, s81, s5")
    g("s_lshl_b32 s5, s3, 12")
    g("s_add_u32 s81, s81, s5")
    g(f"s_add_u32 s81, s81, {OPART_OFF}")
    g("s_mov_b32 s82, 0")
    g("LC_pollml:")
    g("s_sleep 2")
    g("buffer_load_dwordx2 v[8:9], v5, s[64:67], s80 offen sc1")
    g("s_waitcnt vmcnt(0)")
    g("v_add_f32 v10, v8, v9")
    g("v_cmp_u_f32 vcc, v10, v10")
    g("s_add_u32 s82, s82, 1")
    g(f"s_cmp_gt_u32 s82, {SPIN_MAX}")
    g("s_cbranch_scc1 LC_pollO")
    g("s_cbranch_vccnz LC_pollml")
    g("LC_pollO:")
    stamp(g, 14)
    for kc in range(32):
        g(f"buffer_load_ushort v{64+kc}, v6, s[64:67], s81 offen offset:{kc*128} sc1")
    g("v_mov_b32 v17, v8")
    dpp_reduce(g, "v_max_f32", 17, 72)
    g("v_subrev_f32 v17, s72, v8")
    g("v_mul_f32 v17, 0x3fb8aa3b, v17")
    g("v_exp_f32 v17, v17")
    g("s_nop 0")
    g("v_mul_f32 v10, v17, v9")
    dpp_reduce(g, "v_add_f32", 10, 73)
    g("v_mov_b32 v20, s73")
    g("v_mul_f32 v20, 0.5, v20")
    g("v_rcp_f32 v20, v20")
    g("v_and_b32 v21, 0x23, v1")
    g("v_bfe_u32 v22, v1, 2, 2")
    g("v_lshl_add_u32 v21, v22, 3, v21")
    g("v_bfe_u32 v22, v1, 4, 1")
    g("v_lshl_add_u32 v21, v22, 2, v21")
    g("v_lshlrev_b32 v21, 1, v21")
    g("s_lshl_b32 s12, s3, 7")
    g(f"s_add_u32 s12, s12, {L_OL}")
    g("v_add_u32 v21, s12, v21")
    g("v_mov_b32 v11, 0")
    for q in range(4):
        for i in range(8):
            g(f"v_readlane_b32 s{4+i}, v17, {8*q+i}")
        g(f"s_waitcnt vmcnt({24-8*q})")
        for i in range(8):
            kc = 8 * q + i
            g(f"v_lshlrev_b32 v{64+kc}, 16, v{64+kc}")
            g(f"v_fmac_f32 v11, s{4+i}, v{64+kc}")
    stamp(g, 15)
    g("v_mul_f32 v11, v11, v20")
    g("v_cvt_pk_bf16_f32 v11, v11, v11")
    g("ds_write_b16 v21, v11")
    g(f"v_add_u32 v24, {L_WUV}, v43")
    for dt in range(8):
        g(f"v_xor_b32 v25, {dt}, v42")
        g("v_lshl_add_u32 v25, v25, 5, v24")
        for s_ in range(2):
            for half in range(2):
                rr = 128 + dt * 8 + s_ * 4 + half * 2
                g(f"ds_read_b64_tr_b16 v[{rr}:{rr+1}], v25 offset:{s_*8192 + half*4096}")
        if dt % 2 == 1:
            g("s_waitcnt lgkmcnt(4)")
    g("s_waitcnt lgkmcnt(0)")
    signal(g, 8)
    g("v_lshlrev_b32 v22, 7, v41")
    g("v_lshl_add_u32 v22, v2, 4, v22")
    g(f"v_add_u32 v22, {L_OL}, v22")
    lwait(g, 8, 4)
    stamp(g, 7)
    g("ds_read_b128 v[44:47], v22")
    g("ds_read_b128 v[48:51], v22 offset:64")
    g("s_waitcnt lgkmcnt(0)")
    for dt in range(8):
        g(f"v_mfma_f32_16x16x32_bf16 v[{96+4*dt}:{99+4*dt}], v[{128+8*dt}:{131+8*dt}], v[44:47], 0")
        g(f"v_mfma_f32_16x16x32_bf16 v[{96+4*dt}:{99+4*dt}], v[{132+8*dt}:{135+8*dt}], v[48:51], v[{96+4*dt}:{99+4*dt}]")
    g("s_nop 7")
    for dt in range(8):
        g(f"v_cvt_pk_bf16_f32 v{44+2*dt}, v{96+4*dt}, v{97+4*dt}")
        g(f"v_cvt_pk_bf16_f32 v{45+2*dt}, v{98+4*dt}, v{99+4*dt}")
    tr_pipeline(44, 192, 64, 18, lambda ct: ct * 32)
    g("s_lshl_b32 s4, s2, 13")
    g("s_lshl_b32 s5, s3, 9")
    g("s_add_u32 s4, s4, s5")
    g(f"s_add_u32 s6, s4, {SPART_OFF}")
    g("s_nop 7")
    g("v_cmp_gt_u32 vcc, 4, v3")
    g("s_and_saveexec_b64 s[10:11], vcc")
    for mt in range(8):
        g(f"buffer_store_dwordx4 v[{192+4*mt}:{195+4*mt}], v36, s[64:67], s6 offen offset:{mt*64} sc1")
    g("s_mov_b64 exec, s[10:11]")
    stamp(g, 8)
    g("v_mov_b32 v8, 0")
    for i in range(4):
        g(f"v_lshlrev_b32 v9, 16, v{236+i}")
        g(f"v_lshlrev_b32 v10, 16, v{240+i}")
        g("v_fmac_f32 v8, v9, v10")
        g(f"v_and_b32 v9, 0xffff0000, v{236+i}")
        g(f"v_and_b32 v10, 0xffff0000, v{240+i}")
        g("v_fmac_f32 v8, v9, v10")
    dpp_reduce(g, "v_add_f32", 8, 72)
    g("v_mov_b32 v13, s72")
    rb(g, 13, 12)
    g("v_mul_f32 v13, 0xbfb8aa3b, v13")
    g("v_exp_f32 v13, v13")
    g("s_nop 0")
    g("v_add_f32 v13, 1.0, v13")
    g("v_rcp_f32 v13, v13")
    g("s_nop 0")
    rb(g, 13, 12)
    g("v_lshlrev_b32 v245, 16, v245")
    g("v_lshlrev_b32 v244, 16, v244")
    g("s_lshr_b32 s80, s2, 6")
    g("s_and_b32 s81, s2, 63")
    g("v_and_b32 v4, 7, v1")
    g("v_lshlrev_b32 v4, 2, v4")
    g("v_lshrrev_b32 v5, 3, v1")
    g("v_lshl_add_u32 v4, v5, 13, v4")
    g("s_lshl_b32 s4, s3, 19")
    g("s_lshl_b32 s5, s80, 11")
    g("s_add_u32 s4, s4, s5")
    g("s_lshl_b32 s5, s81, 5")
    g("s_add_u32 s83, s4, s5")
    g("s_waitcnt vmcnt(0)")
    signal(g, 9)
    g("s_cmp_lg_u32 s3, 0")
    g("s_cbranch_scc1 LC_nofl")
    lwait(g, 9, 4)
    g("v_lshlrev_b32 v5, 10, v1")
    g("v_mov_b32 v6, 1")
    g("s_lshl_b32 s4, s2, 2")
    g(f"s_add_u32 s4, s4, {FLC_OFF}")
    g("s_mov_b64 exec, 0xffffffff")
    g("buffer_store_dword v6, v5, s[64:67], s4 offen sc1")
    g("s_mov_b64 exec, -1")
    g("LC_nofl:")
    g("s_and_b32 s4, s2, 31")
    g("s_lshl_b32 s4, s4, 10")
    g("s_lshl_b32 s5, s3, 8")
    g("s_add_u32 s4, s4, s5")
    g(f"s_add_u32 s4, s4, {FLC_OFF}")
    g("v_lshlrev_b32 v5, 2, v1")
    g("s_mov_b32 s82, 0")
    g("LC_pollC:")
    g("s_sleep 1")
    g("buffer_load_dword v6, v5, s[64:67], s4 offen sc1")
    g("s_waitcnt vmcnt(0)")
    g("v_cmp_ne_u32 vcc, 1, v6")
    g("s_add_u32 s82, s82, 1")
    g(f"s_cmp_gt_u32 s82, {SPIN_MAX}")
    g("s_cbranch_scc1 LC_pollC2")
    g("s_cbranch_vccnz LC_pollC")
    g("LC_pollC2:")
    stamp(g, 20)
    g(f"s_add_u32 s5, s83, {SPART_OFF}")
    g(f"s_add_u32 s6, s83, {YPART_OFF}")
    for i in range(8):
        g(f"buffer_load_dword v{16+i}, v4, s[64:67], s5 offen sc1")
        g("s_add_u32 s5, s5, 65536")
    for i in range(4, 8):
        g(f"v_mov_b32 v{24+i}, 0")
    for i in range(8):
        if i == 4:
            g("s_cmp_eq_u32 s3, 3")
            g("s_cbranch_scc1 LC_y8")
        g(f"buffer_load_dword v{24+i}, v4, s[64:67], s6 offen sc1")
        g("s_add_u32 s6, s6, 65536")
    g("LC_y8:")
    g("s_waitcnt vmcnt(0)")
    for i in range(1, 8):
        g(f"v_add_f32 v16, v16, v{16+i}")
        g(f"v_add_f32 v24, v24, v{24+i}")
    stamp(g, 16)
    for msk in (8, 16):
        g(f"ds_swizzle_b32 v17, v16 offset:{(msk<<10)|0x1f}")
        g(f"ds_swizzle_b32 v25, v24 offset:{(msk<<10)|0x1f}")
        g("s_waitcnt lgkmcnt(0)")
        g("v_add_f32 v16, v16, v17")
        g("v_add_f32 v24, v24, v25")
    g("v_mov_b32 v17, v16")
    g("v_mov_b32 v25, v24")
    g("s_nop 1")
    g("v_permlane32_swap_b32 v16, v17")
    g("v_permlane32_swap_b32 v24, v25")
    g("s_nop 1")
    g("v_add_f32 v16, v16, v17")
    g("v_add_f32 v24, v24, v25")
    g("v_and_b32 v11, 7, v1")
    g("v_lshlrev_b32 v11, 2, v11")
    g(f"v_add_u32 v11, {L_FIN}, v11")
    g("s_lshl_b32 s4, s3, 6")
    g("v_add_u32 v12, s4, v11")
    g("ds_write_b32 v12, v16")
    g("ds_write_b32 v12, v24 offset:32")
    g("s_waitcnt lgkmcnt(0)")
    signal(g, 10)
    g("s_cmp_lg_u32 s3, 0")
    g("s_cbranch_scc1 L_done")
    lwait(g, 10, 4)
    for w in range(4):
        g(f"ds_read_b32 v{64+w}, v11 offset:{w*64}")
        g(f"ds_read_b32 v{96+w}, v11 offset:{w*64+32}")
    srd(g, 48, 38, 4096)
    g("s_waitcnt lgkmcnt(0)")
    g("v_add_f32 v64, v64, v65\nv_add_f32 v66, v66, v67\nv_add_f32 v64, v64, v66")
    g("v_add_f32 v96, v96, v97\nv_add_f32 v98, v98, v99\nv_add_f32 v96, v96, v98")
    rb(g, 64, 12)
    rb(g, 96, 12)
    g("v_mul_f32 v96, v96, v13")
    rb(g, 96, 12)
    g("v_add_f32 v96, v245, v96")
    rb(g, 96, 12)
    silu_inplace(g, 96, 14)
    rb(g, 96, 12)
    g("v_mul_f32 v64, v64, v96")
    rb(g, 64, 12)
    g("v_add_f32 v64, v244, v64")
    g("v_cvt_pk_bf16_f32 v64, v64, v64")
    g("s_mov_b64 exec, 0xff")
    g("buffer_store_short v64, v246, s[48:51], s78 offen")
    stamp_flush(g, 0)

def kdesc(g, name, vgpr):
    g.raw(".p2align 6")
    g.raw(f".amdhsa_kernel {name}")
    g.raw(f"  .amdhsa_next_free_vgpr {vgpr}")
    g.raw("  .amdhsa_next_free_sgpr 102")
    g.raw(f"  .amdhsa_accum_offset {vgpr}")
    g.raw("  .amdhsa_group_segment_fixed_size 0")
    g.raw("  .amdhsa_kernarg_size 112")
    g.raw("  .amdhsa_user_sgpr_count 2")
    g.raw("  .amdhsa_user_sgpr_kernarg_segment_ptr 1")
    g.raw("  .amdhsa_system_sgpr_workgroup_id_x 1")
    g.raw("  .amdhsa_float_denorm_mode_32 3")
    g.raw(".end_amdhsa_kernel")

def main(out):
    g = G()
    g.L = [f"; @launch kernel=k0_kernel grid=(256,1,1) block=(256,1,1) lds={K0_LDS}",
           f"; @launch kernel=k1_kernel grid=(256,1,1) block=(512,1,1) lds={LDS_TOTAL}" if not os.environ.get("ONLYK0") else ";",
           '.amdgcn_target "amdgcn-amd-amdhsa--gfx950"', ".text"]
    gen_k0(g)
    gen_kernel(g)
    g.raw('.section .rodata,"a"')
    kdesc(g, "k0_kernel", 136)
    kdesc(g, "k1_kernel", 256)
    open(out, "w").write("\n".join(g.L) + "\n")

if __name__ == "__main__":
    if len(sys.argv) > 2 and sys.argv[2] == "debug":
        DEBUG = True
    main(sys.argv[1])
```

```python
import sys, os
NAME = "recurrent_scan__compressed_kv_cla__moe_arch_mod__decode"

XN_OFF   = 0x0
QP_OFF   = 0x140000
QABS_OFF = 0x10000
FFN_OFF  = 0x40000
OPART_OFF= 0x200000
SPART_OFF= 0x600000
YPART_OFF= 0x800000
ML_OFF   = 0xA00000
FLC_OFF  = 0xA10000
STAMP_OFF= 0xC00000
WS_SIZE  = 0x1000000
DEBUG = False
SPIN_MAX = 200000

RS = 1056
R0, S1, XR, S2 = 0, 135168, 151552, 155648
LDS_TOTAL = 163840
L_WQ, L_FF, L_XN, L_QX = R0, S1, XR, S2
L_CKV, L_QA, L_P, L_MX, L_LS = R0, S1, S2, S2 + 4096, S2 + 5120
L_WO, L_WUV, L_WD, L_OL, L_HB, L_HF, L_FIN = R0, S1, S2, XR, XR + 512, XR + 1536, XR + 2048

class G:
    def __init__(self):
        self.L = []
    def __call__(self, s):
        for line in s.strip("\n").split("\n"):
            self.L.append("    " + line.strip() if not line.strip().endswith(":") else line.strip())
    def raw(self, s):
        self.L.append(s)

def srd(g, d, base, size):
    g(f"s_mov_b32 s{d}, s{base}")
    g(f"s_and_b32 s{d+1}, s{base+1}, 0xffff")
    g(f"s_mov_b32 s{d+2}, 0x{size:x}")
    g(f"s_mov_b32 s{d+3}, 0x00020000")

def dpp_reduce(g, op, v, sdst):
    for sh in (1, 2, 4, 8):
        g("s_nop 1")
        g(f"{op}_dpp v{v}, v{v}, v{v} row_shr:{sh} row_mask:0xf bank_mask:0xf")
    g("s_nop 1")
    g(f"{op}_dpp v{v}, v{v}, v{v} row_bcast:15 row_mask:0xa bank_mask:0xf")
    g("s_nop 1")
    g(f"{op}_dpp v{v}, v{v}, v{v} row_bcast:31 row_mask:0xc bank_mask:0xf")
    g("s_nop 1")
    g(f"v_readlane_b32 s{sdst}, v{v}, 63")
    g("s_nop 3")

def rb(g, v, tmp):
    g(f"v_cvt_pk_bf16_f32 v{tmp}, v{v}, v{v}")
    g(f"v_lshlrev_b32 v{v}, 16, v{tmp}")

NSTAMP = 32
def stamp(g, i):
    if DEBUG:
        g("s_memrealtime s[84:85]")
        g("s_waitcnt lgkmcnt(0)")
        g(f"v_writelane_b32 v247, s84, {i}")
HST = bool(os.environ.get("HST"))
HWG = int(os.environ.get("HWG", "0"))
def stamp_flush(g, off):
    if DEBUG and HST:
        if off != 0:
            return
        g("s_waitcnt vmcnt(0) lgkmcnt(0)")
        stamp(g, 31)
        g(f"s_cmp_lg_u32 s2, {HWG}")
        g("s_cbranch_scc1 L_done")
        g("s_mov_b32 s60, s40")
        g("s_and_b32 s61, s41, 0xffff")
        g("s_mov_b32 s62, 256")
        g("s_mov_b32 s63, 0x00020000")
        g("s_mov_b64 exec, 1")
        g("v_mov_b32 v1, 0")
        for k, i in enumerate([0, 1, 2, 3, 4, 5, 17, 6, 14, 15, 7, 8, 20, 31]):
            g(f"v_readlane_b32 s4, v247, {i}")
            g("v_readlane_b32 s5, v247, 0")
            g("s_nop 3")
            g("s_sub_u32 s4, s4, s5")
            g("v_mov_b32 v2, s4")
            g(f"buffer_store_dword v2, v1, s[60:63], 0 offen offset:{8+4*k}")
        return
    if DEBUG:
        g("s_waitcnt vmcnt(0) lgkmcnt(0)")
        stamp(g, 31)
        g("s_memtime s[84:85]")
        g("s_waitcnt lgkmcnt(0)")
        g("s_sub_u32 s84, s84, s86")
        g("v_writelane_b32 v247, s84, 30")
        g("s_lshl_b32 s6, s2, 8")
        g(f"s_add_u32 s6, s6, {STAMP_OFF + off}")
        g("s_mov_b64 exec, 0xffffffff")
        g("v_and_b32 v1, 63, v0")
        g("v_lshlrev_b32 v1, 2, v1")
        g("buffer_store_dword v247, v1, s[64:67], s6 offen")

def layernorm_row(g, vx, vt, s0):
    f = [vt + i for i in range(8)]
    T = vt + 8
    for i in range(4):
        g(f"v_lshlrev_b32 v{f[2*i]}, 16, v{vx+i}")
        g(f"v_and_b32 v{f[2*i+1]}, 0xffff0000, v{vx+i}")
    g(f"v_add_f32 v{T}, v{f[0]}, v{f[1]}")
    for i in range(2, 8):
        g(f"v_add_f32 v{T}, v{T}, v{f[i]}")
    dpp_reduce(g, "v_add_f32", T, s0)
    g(f"v_mov_b32 v{T+1}, s{s0}")
    g(f"v_mul_f32 v{T+1}, 0x3b000000, v{T+1}")
    g(f"v_sub_f32 v{T+2}, v{f[0]}, v{T+1}")
    g(f"v_mul_f32 v{T}, v{T+2}, v{T+2}")
    for i in range(1, 8):
        g(f"v_sub_f32 v{T+2}, v{f[i]}, v{T+1}")
        g(f"v_fmac_f32 v{T}, v{T+2}, v{T+2}")
    dpp_reduce(g, "v_add_f32", T, s0)
    g(f"v_mov_b32 v{T+2}, s{s0}")
    g(f"v_mul_f32 v{T+2}, 0x3b000000, v{T+2}")
    rb(g, T + 1, T + 3)
    rb(g, T + 2, T + 3)
    g(f"v_add_f32 v{T+2}, 0x3727c5ac, v{T+2}")
    rb(g, T + 2, T + 3)
    g(f"v_sqrt_f32 v{T+2}, v{T+2}")
    g("s_nop 0")
    rb(g, T + 2, T + 3)
    g(f"v_rcp_f32 v{T+3}, v{T+2}")
    g("s_nop 0")
    for i in range(8):
        g(f"v_sub_f32 v{f[i]}, v{f[i]}, v{T+1}")
        rb(g, f[i], T + 4)
        g(f"v_mul_f32 v{T+4}, v{f[i]}, v{T+3}")
        g(f"v_fma_f32 v{T+5}, -v{T+4}, v{T+2}, v{f[i]}")
        g(f"v_fma_f32 v{f[i]}, v{T+5}, v{T+3}, v{T+4}")
        rb(g, f[i], T + 4)

def silu_inplace(g, v, t):
    g(f"v_mul_f32 v{t}, 0xbfb8aa3b, v{v}")
    g(f"v_exp_f32 v{t}, v{t}")
    g("s_nop 0")
    g(f"v_add_f32 v{t}, 1.0, v{t}")
    g(f"v_rcp_f32 v{t}, v{t}")
    g("s_nop 0")
    g(f"v_mul_f32 v{v}, v{v}, v{t}")


K0_WQ, K0_FF, K0_XN = 0, 16384, 32768
K0_LDS = 36864
def gen_k0(g):
    name = "k0_kernel"
    g.raw(f".globl {name}")
    g.raw(".p2align 8")
    g.raw(f".type {name},@function")
    g.raw(f"{name}:")
    g("s_cmp_ge_u32 s2, 256")
    g("s_cbranch_scc1 K0_done")
    if HST:
        g("s_memrealtime s[90:91]")
    g("s_load_dwordx16 s[16:31], s[0:1], 0")
    g("s_load_dwordx8 s[32:39], s[0:1], 64")
    g("s_load_dwordx4 s[40:43], s[0:1], 96")
    g("v_lshrrev_b32 v1, 6, v0")
    g("v_and_b32 v0, 0xff, v0")
    g("v_readfirstlane_b32 s3, v1")
    g("v_and_b32 v1, 63, v0")
    g("v_lshrrev_b32 v2, 4, v1")
    g("v_and_b32 v3, 15, v1")
    g("v_lshrrev_b32 v40, 2, v3")
    g("v_and_b32 v41, 3, v3")
    g("v_lshlrev_b32 v4, 4, v1")
    g("s_and_b32 s68, s2, 7")
    g("s_lshl_b32 s68, s68, 2")
    g("s_lshr_b32 s4, s2, 3")
    g("s_and_b32 s4, s4, 3")
    g("s_add_u32 s68, s68, s4")
    g("s_lshr_b32 s69, s2, 5")
    g("s_mov_b32 s4, 0x12492493")
    g("s_mul_hi_u32 s71, s2, s4")
    g("s_mul_i32 s4, s71, 14")
    g("s_sub_u32 s70, s2, s4")
    g("s_waitcnt lgkmcnt(0)")
    srd(g, 64, 42, WS_SIZE)
    srd(g, 44, 20, 512 * 8192)
    srd(g, 48, 32, 512 * 3584)
    srd(g, 52, 34, 512 * 3584)
    srd(g, 56, 16, 4096)
    g("s_lshl_b32 s4, s3, 10")
    g("buffer_load_dwordx4 v[8:11], v4, s[56:59], s4 offen")
    g("s_and_b32 s5, s3, 1")
    g("s_lshl_b32 s5, s5, 3")
    g("v_lshlrev_b32 v5, 1, v2")
    g("v_add_u32 v5, s5, v5")
    g("v_xor_b32 v5, v5, v3")
    g("v_lshlrev_b32 v5, 4, v5")
    g("v_lshl_add_u32 v6, v2, 13, v5")
    g("s_lshl_b32 s6, s68, 8")
    g("s_lshl_b32 s7, s69, 19")
    g("s_add_u32 s6, s6, s7")
    g("s_lshl_b32 s7, s3, 15")
    g("s_add_u32 s6, s6, s7")
    g("s_lshl_b32 s8, s3, 10")
    for n in range(4):
        g("s_mov_b32 m0, s8")
        g("s_add_u32 s8, s8, 4096")
        g("buffer_load_dwordx4 v6, s[44:47], s6 offen nt lds")
        g("s_add_u32 s6, s6, 131072")
    g("s_cmp_ge_u32 s2, 224")
    g("s_cbranch_scc1 K0_noffn")
    g("s_mov_b32 s8, 3584")
    g("v_mul_lo_u32 v12, v2, s8")
    g("v_add_u32 v12, v12, v5")
    g("s_lshl_b32 s7, s70, 8")
    g("s_lshl_b32 s9, s71, 5")
    g("s_lshl_b32 s10, s3, 2")
    g("s_add_u32 s9, s9, s10")
    g("s_mul_i32 s9, s9, 3584")
    g("s_add_u32 s7, s7, s9")
    g("s_lshl_b32 s8, s3, 10")
    g(f"s_add_u32 s8, s8, {K0_FF}")
    for mat in range(2):
        for ii in range(2):
            g(f"s_add_u32 s10, s8, {mat*8192 + ii*4096}")
            g("s_mov_b32 m0, s10")
            g(f"s_add_u32 s9, s7, {ii*16*3584}")
            g(f"buffer_load_dwordx4 v12, s[{48+4*mat}:{51+4*mat}], s9 offen nt lds")
    g("K0_noffn:")
    if os.environ.get("PFCKV"):
        srd(g, 60, 18, 16 << 20)
        g("s_lshr_b32 s74, s2, 3")
        g("s_and_b32 s74, s74, 1")
        g("s_and_b32 s4, s2, 7")
        g("s_lshr_b32 s5, s2, 4")
        g("s_lshl_b32 s5, s5, 3")
        g("s_or_b32 s4, s4, s5")
        g("s_lshl_b32 s7, s4, 17")
        g("s_lshl_b32 s8, s74, 16")
        g("s_add_u32 s7, s7, s8")
        g("s_lshl_b32 s8, s3, 14")
        g("s_add_u32 s7, s7, s8")
        for n in range(16):
            g(f"buffer_load_dwordx4 v[{64+4*(n&3)}:{67+4*(n&3)}], v4, s[60:63], s7 offen" + os.environ["PFCKV"].replace("_", " "))
            g("s_add_u32 s7, s7, 1024")
    g("s_waitcnt vmcnt(4)")
    layernorm_row(g, 8, 20, 72)
    for i in range(4):
        g(f"v_cvt_pk_bf16_f32 v{36+i}, v{20+2*i}, v{21+2*i}")
    g("v_lshrrev_b32 v14, 2, v1")
    g("v_lshlrev_b32 v14, 6, v14")
    g("v_and_b32 v15, 1, v1")
    g("v_lshl_add_u32 v14, v15, 5, v14")
    g("v_bfe_u32 v15, v1, 1, 1")
    g("v_lshl_add_u32 v14, v15, 3, v14")
    g("s_lshl_b32 s4, s3, 10")
    g(f"s_add_u32 s4, s4, {K0_XN}")
    g("v_add_u32 v14, s4, v14")
    g("ds_write_b64 v14, v[36:37]")
    g("ds_write_b64 v14, v[38:39] offset:16")
    g("s_cmp_lg_u32 s2, 0")
    g("s_cbranch_scc1 K0_noxn")
    g("s_lshl_b32 s4, s3, 10")
    g("buffer_store_dwordx4 v[36:39], v4, s[64:67], s4 offen")
    g("K0_noxn:")
    g("v_and_b32 v42, 1, v2")
    g("v_lshl_add_u32 v42, v42, 2, v40")
    g("v_lshl_add_u32 v43, v2, 2, v40")
    g("v_lshlrev_b32 v43, 8, v43")
    g("v_lshl_add_u32 v43, v41, 3, v43")
    g("s_lshl_b32 s4, s3, 1")
    g("v_xor_b32 v44, s4, v42")
    g("v_lshl_add_u32 v44, v44, 5, v43")
    g("s_add_u32 s4, s4, 1")
    g("v_xor_b32 v45, s4, v42")
    g("v_lshl_add_u32 v45, v45, 5, v43")
    g("v_lshlrev_b32 v48, 10, v41")
    g("v_lshl_add_u32 v48, v2, 4, v48")
    g(f"v_add_u32 v48, {K0_XN}, v48")
    g("s_waitcnt vmcnt(0) lgkmcnt(0)")
    g("s_barrier")
    g("v_mov_b32 v16, -1\nv_mov_b32 v17, -1\nv_mov_b32 v18, -1\nv_mov_b32 v19, -1")
    g("v_lshlrev_b32 v13, 4, v0")
    g("s_lshl_b32 s7, s2, 15")
    g(f"s_add_u32 s7, s7, {OPART_OFF}")
    g("s_cmp_lg_u32 s3, 0")
    g("s_cbranch_scc1 K0_noml")
    g("s_lshl_b32 s7, s2, 7")
    g(f"s_add_u32 s8, s7, {ML_OFF}")
    g("s_mov_b64 exec, 0xff")
    g("buffer_store_dwordx4 v[16:19], v13, s[64:67], s8 offen")
    g("v_mov_b32 v20, 0\nv_mov_b32 v21, 0\nv_mov_b32 v22, 0\nv_mov_b32 v23, 0")
    g(f"s_add_u32 s8, s7, {FLC_OFF}")
    g("buffer_store_dwordx4 v[20:23], v13, s[64:67], s8 offen")
    g("s_mov_b64 exec, 0xffffffff")
    g("s_lshl_b32 s7, s2, 9")
    g(f"s_add_u32 s8, s7, {QABS_OFF}")
    g("buffer_store_dwordx4 v[16:19], v13, s[64:67], s8 offen")
    g("s_mov_b64 exec, -1")
    g("K0_noml:")
    g("s_lshl_b32 s4, s69, 7")
    g("v_add_u32 v52, s4, v48")
    g("ds_read_b128 v[96:99], v52")
    g("ds_read_b128 v[100:103], v52 offset:64")
    for d in range(2):
        for s_ in range(2):
            for half in range(2):
                rr = 104 + (d * 2 + s_) * 4 + half * 2
                g(f"ds_read_b64_tr_b16 v[{rr}:{rr+1}], v{44+d} offset:{K0_WQ + s_*8192 + half*4096}")
    g("s_waitcnt lgkmcnt(0)")
    for d in range(2):
        g(f"v_mfma_f32_16x16x32_bf16 v[{80+4*d}:{83+4*d}], v[{104+8*d}:{107+8*d}], v[96:99], 0")
        g(f"v_mfma_f32_16x16x32_bf16 v[{80+4*d}:{83+4*d}], v[{108+8*d}:{111+8*d}], v[100:103], v[{80+4*d}:{83+4*d}]")
    g("v_lshlrev_b32 v51, 9, v41")
    g("v_lshl_add_u32 v51, v2, 4, v51")
    g("s_lshl_b32 s4, s68, 14")
    g("s_lshl_b32 s5, s69, 11")
    g("s_add_u32 s4, s4, s5")
    g("s_lshl_b32 s5, s3, 7")
    g("s_add_u32 s4, s4, s5")
    g(f"s_add_u32 s4, s4, {QP_OFF}")
    g("s_nop 7")
    g("v_cmp_gt_u32 vcc, 4, v3")
    g("s_and_saveexec_b64 s[10:11], vcc")
    for d in range(2):
        g(f"buffer_store_dwordx4 v[{80+4*d}:{83+4*d}], v51, s[64:67], s4 offen offset:{64*d}")
    g("s_mov_b64 exec, s[10:11]")
    g("s_cmp_ge_u32 s2, 224")
    g("s_cbranch_scc1 K0_done")
    g("s_lshl_b32 s4, s71, 6")
    g("v_add_u32 v52, s4, v48")
    g("ds_read_b128 v[96:99], v52")
    for mat in range(2):
        for d in range(2):
            for half in range(2):
                rr = 100 + (mat * 2 + d) * 4 + half * 2
                g(f"ds_read_b64_tr_b16 v[{rr}:{rr+1}], v{44+d} offset:{K0_FF + mat*8192 + half*4096}")
    g("s_waitcnt lgkmcnt(0)")
    for mat in range(2):
        for d in range(2):
            q = mat * 2 + d
            g(f"v_mfma_f32_16x16x32_bf16 v[{120+4*q}:{123+4*q}], v[{100+4*q}:{103+4*q}], v[96:99], 0")
    g("s_mov_b32 s4, 7168")
    g("v_mul_lo_u32 v54, v41, s4")
    g("v_lshl_add_u32 v54, v2, 4, v54")
    g("s_mul_i32 s4, s71, 57344")
    g("s_lshl_b32 s5, s70, 9")
    g("s_add_u32 s4, s4, s5")
    g("s_lshl_b32 s5, s3, 7")
    g("s_add_u32 s4, s4, s5")
    g(f"s_add_u32 s4, s4, {FFN_OFF}")
    g("s_nop 7")
    g("v_cmp_gt_u32 vcc, 4, v3")
    g("s_and_saveexec_b64 s[10:11], vcc")
    for mat in range(2):
        g(f"s_add_u32 s5, s4, {mat*28672}")
        for d in range(2):
            q = mat * 2 + d
            g(f"buffer_store_dwordx4 v[{120+4*q}:{123+4*q}], v54, s[64:67], s5 offen offset:{64*d}")
    g("s_mov_b64 exec, s[10:11]")
    if HST:
        g("K0_hst:")
        g(f"s_cmp_lg_u32 s2, {HWG}")
        g("s_cbranch_scc1 K0_done")
        g("s_cmp_lg_u32 s3, 0")
        g("s_cbranch_scc1 K0_done")
        g("s_waitcnt vmcnt(0)")
        g("s_memrealtime s[92:93]")
        srd(g, 60, 40, 256)
        g("s_waitcnt lgkmcnt(0)")
        g("s_mov_b64 exec, 1")
        g("v_mov_b32 v1, 0")
        g("v_mov_b32 v2, s90")
        g("v_mov_b32 v3, s92")
        g("buffer_store_dwordx2 v[2:3], v1, s[60:63], 0 offen")
    g("K0_done:")
    g("s_endpgm")


L_CNT = XR + 1792
_lbl = [0]
def signal(g, idx):
    g("s_mov_b64 exec, 1")
    g(f"ds_add_u32 v250, v251 offset:{4*idx}")
    g("s_mov_b64 exec, -1")
def lwait(g, idx, cnt, sleep=0):
    _lbl[0] += 1
    L = f"LW{_lbl[0]}"
    g(f"{L}:")
    if sleep:
        g(f"s_sleep {sleep}")
    g(f"ds_read_b32 v252, v250 offset:{4*idx}")
    g("s_waitcnt lgkmcnt(0)")
    g("v_readfirstlane_b32 s79, v252")
    g(f"s_cmp_lt_u32 s79, {cnt}")
    g(f"s_cbranch_scc1 {L}")

def gen_kernel(g):
    name = "k1_kernel"
    g.raw(f".globl {name}")
    g.raw(".p2align 8")
    g.raw(f".type {name},@function")
    g.raw(f"{name}:")
    g("s_cmp_ge_u32 s2, 256")
    g("s_cbranch_scc1 L_done")
    stamp(g, 0)
    if DEBUG:
        g("s_memtime s[86:87]")
    g("s_load_dwordx16 s[16:31], s[0:1], 0")
    g("s_load_dwordx8 s[32:39], s[0:1], 64")
    g("s_load_dwordx4 s[40:43], s[0:1], 96")
    g("v_lshrrev_b32 v1, 6, v0")
    g("v_and_b32 v0, 0xff, v0")
    g("v_readfirstlane_b32 s77, v1")
    g("v_and_b32 v1, 63, v0")
    g("v_lshrrev_b32 v2, 4, v1")
    g("v_and_b32 v3, 15, v1")
    g("v_lshrrev_b32 v40, 2, v3")
    g("v_and_b32 v41, 3, v3")
    g("v_lshlrev_b32 v4, 4, v1")
    g(f"v_mov_b32 v250, {L_CNT}")
    g("v_mov_b32 v251, 1")
    g("v_lshlrev_b32 v252, 2, v1")
    g(f"v_add_u32 v252, {L_CNT}, v252")
    g("v_mov_b32 v253, 0")
    g("ds_write_b32 v252, v253")
    g("s_and_b32 s3, s77, 3")
    g("s_lshr_b32 s77, s77, 2")
    g("s_and_b32 s68, s2, 7")
    g("s_lshl_b32 s68, s68, 2")
    g("s_lshr_b32 s4, s2, 3")
    g("s_and_b32 s4, s4, 3")
    g("s_add_u32 s68, s68, s4")
    g("s_lshr_b32 s69, s2, 5")
    g("s_lshr_b32 s74, s2, 3")
    g("s_and_b32 s74, s74, 1")
    g("s_and_b32 s4, s2, 7")
    g("s_lshr_b32 s5, s2, 4")
    g("s_lshl_b32 s5, s5, 3")
    g("s_or_b32 s4, s4, s5")
    g("s_lshr_b32 s75, s4, 5")
    g("s_and_b32 s76, s4, 31")
    g("s_waitcnt lgkmcnt(0)")
    g("s_barrier")
    srd(g, 64, 42, WS_SIZE)
    g("s_cmp_eq_u32 s77, 0")
    g("s_cbranch_scc0 L_loader")
    gen_compute(g)
    g("s_branch L_done")
    g("L_loader:")
    gen_loader(g)
    g("L_done:")
    g("s_endpgm")

def gen_loader(g):
    srd(g, 44, 18, 16 << 20)
    g("s_lshl_b32 s7, s75, 22")
    g("s_lshl_b32 s8, s76, 17")
    g("s_add_u32 s7, s7, s8")
    g("s_lshl_b32 s8, s3, 15")
    g("s_add_u32 s7, s7, s8")
    g(f"s_mul_i32 s8, s3, {32*RS}")
    for n in range(32):
        g("s_mov_b32 m0, s8")
        g(f"s_add_u32 s8, s8, {RS}")
        g("buffer_load_dwordx4 v4, s[44:47], s7 offen nt lds")
        g("s_add_u32 s7, s7, 1024")
    stamp(g, 4)
    g("s_and_b32 s5, s3, 1")
    g("s_lshl_b32 s5, s5, 3")
    g("v_lshlrev_b32 v5, 1, v2")
    g("v_add_u32 v5, s5, v5")
    g("v_xor_b32 v5, v5, v3")
    g("v_lshlrev_b32 v5, 4, v5")
    g("v_lshl_add_u32 v6, v2, 13, v5")
    srd(g, 48, 26, 32 * 131072)
    g("s_lshl_b32 s6, s68, 17")
    g("s_lshl_b32 s7, s3, 15")
    g("s_add_u32 s6, s6, s7")
    NW1 = int(os.environ.get("NW1", "0"))
    def wo_loads(lo, hi, tag):
        for jj in range(8):
            g(f"s_cmp_eq_u32 s69, {jj}")
            g(f"s_cbranch_scc1 LL_wo{tag}{jj}")
        for jj in range(8):
            g(f"LL_wo{tag}{jj}:")
            for n in range(lo, hi):
                r = (n + 4 * jj) & 31
                g(f"s_add_u32 s7, s6, {r*1024}")
                g(f"buffer_load_dwordx4 v[{64+4*r}:{67+4*r}], v4, s[48:51], s7 offen nt")
            g(f"s_branch LL_wod{tag}")
        g(f"LL_wod{tag}:")
    if NW1:
        wo_loads(0, NW1, "a")
    g(f"s_waitcnt vmcnt({NW1})")
    signal(g, 1)
    stamp(g, 5)
    wo_loads(NW1, 32, "b")
    srd(g, 44, 24, 512 * 8192)
    g("s_lshl_b32 s6, s68, 8")
    g("s_lshl_b32 s7, s69, 19")
    g("s_add_u32 s6, s6, s7")
    g("s_lshl_b32 s7, s3, 15")
    g("s_add_u32 s6, s6, s7")
    for n in range(4):
        g(f"buffer_load_dwordx4 v[{192+4*n}:{195+4*n}], v6, s[44:47], s6 offen nt")
        g("s_add_u32 s6, s6, 131072")
    srd(g, 52, 36, 1792 * 1024)
    g("s_lshl_b32 s4, s2, 3")
    g("s_lshl_b32 s5, s3, 1")
    g("s_add_u32 s4, s4, s5")
    g("s_lshl_b32 s4, s4, 10")
    for i in range(2):
        g(f"buffer_load_dwordx4 v[{208+4*i}:{211+4*i}], v4, s[52:55], s4 offen offset:{1024*i} nt")
    stamp(g, 6)
    g("s_waitcnt vmcnt(0)")
    stamp(g, 7)
    lwait(g, 3, 4, 2)
    g("s_lshl_b32 s8, s3, 10")
    g(f"s_add_u32 s8, s8, {L_WUV}")
    g("v_add_u32 v7, s8, v4")
    for n in range(4):
        g(f"ds_write_b128 v7, v[{192+4*n}:{195+4*n}] offset:{n*4096}")
    lwait(g, 11, 4, 2)
    g(f"s_mul_i32 s8, s3, {32*RS}")
    g("v_add_u32 v7, s8, v4")
    for n in range(32):
        g(f"ds_write_b128 v7, v[{64+4*n}:{67+4*n}] offset:{n*RS}")
    g("s_lshl_b32 s8, s3, 11")
    g(f"s_add_u32 s8, s8, {L_WD}")
    g("v_add_u32 v7, s8, v4")
    for i in range(2):
        g(f"ds_write_b128 v7, v[{208+4*i}:{211+4*i}] offset:{1024*i}")
    g("s_waitcnt lgkmcnt(0)")
    signal(g, 6)
    stamp(g, 8)
    if DEBUG:
        g("s_cmp_lg_u32 s3, 0")
        g("s_cbranch_scc1 L_done")
    stamp_flush(g, 128)

def gen_compute(g):
    srd(g, 48, 22, 512 * 8192)
    srd(g, 52, 16, 4096)
    g("v_lshlrev_b32 v5, 3, v1")
    g("s_lshl_b32 s4, s68, 14")
    g("s_lshl_b32 s5, s3, 9")
    g("s_add_u32 s4, s4, s5")
    g(f"s_add_u32 s4, s4, {QP_OFF}")
    for p in range(8):
        g(f"buffer_load_dwordx2 v[{96+2*p}:{97+2*p}], v5, s[64:67], s4 offen offset:{2048*p if p < 2 else 0}" if p < 2 else f"buffer_load_dwordx2 v[{96+2*p}:{97+2*p}], v5, s[64:67], s5 offen offset:{2048*(p&1)}")
        if p & 1:
            g(f"s_add_u32 s5, s4, {2048*(p+1)}")
    g("s_lshl_b32 s6, s68, 8")
    g("s_lshl_b32 s7, s69, 6")
    g("s_lshl_b32 s8, s3, 4")
    g("s_add_u32 s7, s7, s8")
    g("v_add_u32 v7, s7, v3")
    g("v_lshlrev_b32 v7, 13, v7")
    g("v_lshl_add_u32 v7, v2, 4, v7")
    g("v_add_u32 v7, s6, v7")
    for ks in range(4):
        g(f"buffer_load_dwordx4 v[{64+4*ks}:{67+4*ks}], v7, s[48:51], 0 offen offset:{64*ks} nt")
    g("v_and_b32 v42, 1, v2")
    g("v_lshl_add_u32 v42, v42, 2, v40")
    g("v_lshl_add_u32 v43, v2, 2, v40")
    g("v_lshlrev_b32 v43, 8, v43")
    g("v_lshl_add_u32 v43, v41, 3, v43")
    g("s_lshl_b32 s4, s3, 8")
    g(f"s_add_u32 s4, s4, {L_QX}")
    g("v_lshlrev_b32 v49, 2, v1")
    g("v_add_u32 v49, s4, v49")
    g("v_lshlrev_b32 v50, 8, v41")
    g("v_lshl_add_u32 v50, v2, 4, v50")
    g(f"v_add_u32 v50, {L_QX}, v50")
    g("s_waitcnt vmcnt(4)")
    stamp(g, 1)
    for p in range(1, 8):
        g(f"v_add_f32 v96, v96, v{96+2*p}")
        g(f"v_add_f32 v97, v97, v{97+2*p}")
    g("v_cvt_pk_bf16_f32 v88, v96, v97")
    g("ds_write_b32 v49, v88")
    g("s_waitcnt lgkmcnt(0)")
    signal(g, 0)
    lwait(g, 0, 4)
    for ks in range(4):
        g(f"ds_read_b128 v[{96+4*ks}:{99+4*ks}], v50 offset:{64*ks}")
    g("s_waitcnt vmcnt(0) lgkmcnt(0)")
    g("v_mfma_f32_16x16x32_bf16 v[80:83], v[64:67], v[96:99], 0")
    for ks in range(1, 4):
        g(f"v_mfma_f32_16x16x32_bf16 v[80:83], v[{64+4*ks}:{67+4*ks}], v[{96+4*ks}:{99+4*ks}], v[80:83]")
    g("v_lshlrev_b32 v51, 15, v41")
    g("v_lshl_add_u32 v51, v2, 3, v51")
    g("s_lshl_b32 s4, s68, 10")
    g("s_lshl_b32 s5, s69, 7")
    g("s_add_u32 s4, s4, s5")
    g("s_lshl_b32 s5, s3, 5")
    g("s_add_u32 s4, s4, s5")
    g(f"s_add_u32 s4, s4, {QABS_OFF}")
    g("s_nop 7")
    g("v_cvt_pk_bf16_f32 v88, v80, v81")
    g("v_cvt_pk_bf16_f32 v89, v82, v83")
    g("v_cmp_gt_u32 vcc, 4, v3")
    g("s_and_saveexec_b64 s[10:11], vcc")
    g("buffer_store_dwordx2 v[88:89], v51, s[64:67], s4 offen sc1")
    g("s_mov_b64 exec, s[10:11]")
    stamp(g, 2)
    g("s_cmp_ge_u32 s2, 224")
    g("s_cbranch_scc1 LC_nf1")
    g("v_and_b32 v7, 7, v1")
    g("v_lshlrev_b32 v7, 2, v7")
    g("v_lshrrev_b32 v30, 3, v1")
    g("s_mov_b32 s4, 7168")
    g("v_mul_lo_u32 v30, v30, s4")
    g("v_add_u32 v7, v7, v30")
    g("s_mul_i32 s4, s3, 229376")
    g("s_lshl_b32 s5, s2, 5")
    g("s_add_u32 s4, s4, s5")
    g(f"s_add_u32 s4, s4, {FFN_OFF}")
    for i in range(4):
        g(f"buffer_load_dword v{232+i}, v7, s[64:67], s4 offen")
        g("s_add_u32 s4, s4, 57344")
    g("LC_nf1:")
    srd(g, 48, 30, 1024)
    g("s_lshr_b32 s4, s2, 6")
    g("s_lshl_b32 s4, s4, 10")
    g("buffer_load_dwordx4 v[236:239], v4, s[64:67], s4 offen")
    g("buffer_load_dwordx4 v[240:243], v4, s[48:51], 0 offen")
    g("v_and_b32 v246, 7, v1")
    g("v_lshlrev_b32 v246, 1, v246")
    g("s_and_b32 s5, s2, 63")
    g("s_lshl_b32 s5, s5, 4")
    g("s_add_u32 s78, s5, s4")
    g("buffer_load_ushort v244, v246, s[52:55], s78 offen")
    g("buffer_load_ushort v245, v246, s[64:67], s78 offen")
    g("s_lshl_b32 s6, s3, 2")
    for i in range(4):
        g(f"s_add_u32 s7, s6, {i}")
        g(f"v_xor_b32 v{24+i}, s7, v1")
        g(f"v_lshlrev_b32 v{24+i}, 4, v{24+i}")
        g("s_lshl_b32 s7, s7, 10")
        g(f"s_add_u32 s7, s7, {L_QA}")
        g(f"v_add_u32 v{24+i}, s7, v{24+i}")
    g("s_lshl_b32 s5, s75, 5")
    g("s_lshl_b32 s6, s74, 4")
    g("s_add_u32 s5, s5, s6")
    g("s_lshl_b32 s6, s3, 2")
    g("s_add_u32 s5, s5, s6")
    g("s_lshl_b32 s5, s5, 10")
    g(f"s_add_u32 s5, s5, {QABS_OFF}")
    g("s_mov_b32 s82, 0")
    if os.environ.get("LATEPOLL"):
        lwait(g, 1, 4, 2)
    else:
        g("s_sleep 16")
    g("LC_pollA:")
    g("s_sleep 8" if not os.environ.get("LATEPOLL") else "s_sleep 1")
    for i in range(4):
        g(f"buffer_load_dwordx4 v[{8+4*i}:{11+4*i}], v4, s[64:67], s5 offen offset:{1024*i} sc1")
    g("s_waitcnt vmcnt(0)")
    g("v_max3_u32 v28, v8, v9, v10")
    for i in range(6):
        g(f"v_max3_u32 v28, v28, v{11+2*i}, v{12+2*i}")
    g("v_max_u32 v28, v28, v23")
    g("v_cmp_eq_u32 vcc, -1, v28")
    g("s_add_u32 s82, s82, 1")
    g(f"s_cmp_gt_u32 s82, {SPIN_MAX}")
    g("s_cbranch_scc1 LC_pollAd")
    g("s_cbranch_vccnz LC_pollA")
    g("LC_pollAd:")
    stamp(g, 3)
    for i in range(4):
        g(f"ds_write_b128 v{24+i}, v[{8+4*i}:{11+4*i}]")
    for i in range(4):
        g(f"v_add_u32 v6, {4*i}, v2")
        g("v_xor_b32 v6, v6, v3")
        g("v_lshlrev_b32 v6, 4, v6")
        g(f"v_lshl_add_u32 v{8+i}, v3, 10, v6")
        g(f"v_add_u32 v{8+i}, {L_QA}, v{8+i}")
    g("s_lshl_b32 s4, s3, 5")
    g("v_add_u32 v12, s4, v3")
    g(f"s_mov_b32 s4, {RS}")
    g("v_mul_lo_u32 v12, v12, s4")
    g("v_lshl_add_u32 v12, v2, 4, v12")
    for i in range(8):
        g(f"v_mov_b32 v{48+i}, 0")
    g("s_waitcnt lgkmcnt(0)")
    signal(g, 2)
    lwait(g, 2, 4)
    for s_ in range(16):
        g(f"ds_read_b128 v[{64+4*s_}:{67+4*s_}], v{8+(s_&3)} offset:{(s_>>2)*256}")
    lwait(g, 1, 4, 1)
    stamp(g, 4)
    def sissue(grp):
        e = grp & 1
        for kk in range(4):
            s_ = grp * 4 + kk
            for T in range(2):
                rr = 128 + e * 32 + (kk * 2 + T) * 4
                g(f"ds_read_b128 v[{rr}:{rr+3}], v12 offset:{T*16*RS + s_*64}")
    def scompute(grp):
        e = grp & 1
        for kk in range(4):
            s_ = grp * 4 + kk
            for T in range(2):
                rr = 128 + e * 32 + (kk * 2 + T) * 4
                g(f"v_mfma_f32_16x16x32_bf16 v[{48+4*T}:{51+4*T}], v[{rr}:{rr+3}], v[{64+4*s_}:{67+4*s_}], v[{48+4*T}:{51+4*T}]")
    sissue(0)
    for grp in range(4):
        if grp < 3:
            sissue(grp + 1)
            g("s_waitcnt lgkmcnt(8)")
        else:
            g("s_waitcnt lgkmcnt(0)")
        scompute(grp)
    g("v_lshlrev_b32 v13, 6, v3")
    g("v_lshl_add_u32 v14, v2, 2, v13")
    g("s_lshl_b32 s4, s3, 4")
    g("v_add_u32 v14, s4, v14")
    g(f"v_add_u32 v15, {L_MX}, v14")
    g(f"v_add_u32 v16, {L_MX}, v13")
    g("s_nop 3")
    for i in range(8):
        rb(g, 48 + i, 56)
        g(f"v_mul_f32 v{48+i}, 0x3db504f3, v{48+i}")
        rb(g, 48 + i, 56)
    g("v_max3_f32 v56, v48, v49, v50")
    g("v_max3_f32 v56, v56, v51, v52")
    g("v_max3_f32 v56, v56, v53, v54")
    g("v_max_f32 v56, v56, v55")
    g("ds_write_b32 v15, v56")
    g("s_waitcnt lgkmcnt(0)")
    signal(g, 3)
    lwait(g, 3, 4)
    for i in range(4):
        g(f"ds_read_b128 v[{128+4*i}:{131+4*i}], v16 offset:{16*i}")
    g("s_waitcnt lgkmcnt(0)")
    g("v_max3_f32 v57, v128, v129, v130")
    for i in range(6):
        g(f"v_max3_f32 v57, v57, v{131+2*i}, v{132+2*i}")
    g("v_max_f32 v57, v57, v143")
    for i in range(8):
        g(f"v_sub_f32 v{48+i}, v{48+i}, v57")
        g(f"v_mul_f32 v{48+i}, 0x3fb8aa3b, v{48+i}")
        g(f"v_exp_f32 v{48+i}, v{48+i}")
    g("s_nop 0")
    g("v_add_f32 v58, v48, v49")
    for i in range(2, 8):
        g(f"v_add_f32 v58, v58, v{48+i}")
    for i in range(4):
        g(f"v_cvt_pk_bf16_f32 v{60+i}, v{48+2*i}, v{49+2*i}")
    g(f"v_add_u32 v15, {L_LS}, v14")
    g("ds_write_b32 v15, v58")
    g("s_lshl_b32 s4, s3, 10")
    g(f"s_add_u32 s4, s4, {L_P}")
    g("v_add_u32 v17, s4, v4")
    g("ds_write_b128 v17, v[60:63]")
    g(f"v_add_u32 v17, {L_P}, v4")
    g("v_lshl_add_u32 v18, v2, 2, v40")
    g(f"s_mov_b32 s4, {RS}")
    g("v_mul_lo_u32 v18, v18, s4")
    g("s_lshl_b32 s4, s3, 8")
    g("v_add_u32 v18, s4, v18")
    g("v_lshl_add_u32 v20, v41, 4, v18")
    g(f"v_add_u32 v21, {64*RS}, v20")
    g("v_lshl_add_u32 v18, v41, 3, v18")
    g(f"v_add_u32 v19, {64*RS}, v18")
    g("s_waitcnt lgkmcnt(0)")
    signal(g, 4)
    lwait(g, 4, 4)
    stamp(g, 5)
    for u in range(4):
        g(f"ds_read_b128 v[{64+4*u}:{67+4*u}], v17 offset:{u*1024}")
    g(f"v_add_u32 v16, {L_LS}, v13")
    for i in range(4):
        g(f"ds_read_b128 v[{80+4*i}:{83+4*i}], v16 offset:{16*i}")
    def tr_pipeline(bfrag, accbase, tmpbase, areg, coloff):
        def pissue(ct):
            e = ct & 1
            for u in range(4):
                for half in range(2):
                    rr = tmpbase + e * 16 + u * 4 + half * 2
                    off = (32 * (u & 1) + 16 * half) * RS + coloff(ct)
                    g(f"ds_read_b64_tr_b16 v[{rr}:{rr+1}], v{areg + (u>>1)} offset:{off}")
        def pcompute(ct):
            e = ct & 1
            for u in range(4):
                rr = tmpbase + e * 16 + u * 4
                c = "0" if u == 0 else f"v[{accbase+4*ct}:{accbase+3+4*ct}]"
                g(f"v_mfma_f32_16x16x32_bf16 v[{accbase+4*ct}:{accbase+3+4*ct}], v[{rr}:{rr+3}], v[{bfrag+4*u}:{bfrag+3+4*u}], {c}")
        pissue(0)
        for ct in range(8):
            if ct < 7:
                pissue(ct + 1)
                g("s_waitcnt lgkmcnt(8)")
            else:
                g("s_waitcnt lgkmcnt(0)")
            pcompute(ct)
    tr_pipeline(64, 192, 128, 20, lambda ct: (ct >> 1) * 64 + (ct & 1) * 8)
    signal(g, 11)
    g("v_add_f32 v59, v80, v81")
    for i in range(2, 16):
        g(f"v_add_f32 v59, v59, v{80+i}")
    g("v_mov_b32 v58, v57")
    g("v_lshlrev_b32 v22, 17, v3")
    g("v_lshl_add_u32 v22, v2, 4, v22")
    g("s_lshl_b32 s4, s74, 21")
    g("s_lshl_b32 s5, s3, 15")
    g("s_add_u32 s4, s4, s5")
    g("s_lshl_b32 s5, s75, 12")
    g("s_add_u32 s4, s4, s5")
    g("s_lshl_b32 s5, s76, 7")
    g("s_add_u32 s4, s4, s5")
    g(f"s_add_u32 s4, s4, {OPART_OFF}")
    g("s_add_u32 s5, s4, 16384")
    for p in range(4):
        for q in range(4):
            g(f"v_cvt_pk_bf16_f32 v{128+4*p+q}, v{192+8*p+2*q}, v{193+8*p+2*q}")
        g(f"buffer_store_dwordx4 v[{128+4*p}:{131+4*p}], v22, s[64:67], s{4+(p>>1)} offen offset:{(p&1)*64} sc1")
    stamp(g, 17)
    g("s_cmp_ge_u32 s2, 224")
    g("s_cbranch_scc1 LC_nf2")
    g("v_add_f32 v232, v232, v233")
    g("v_add_f32 v234, v234, v235")
    g("v_add_f32 v232, v232, v234")
    g("v_lshlrev_b32 v22, 2, v0")
    g(f"v_add_u32 v22, {L_HB}, v22")
    g("ds_write_b32 v22, v232")
    g("LC_nf2:")
    g("s_waitcnt vmcnt(0) lgkmcnt(0)")
    signal(g, 5)
    g("s_cmp_lg_u32 s3, 0")
    g("s_cbranch_scc1 LC_noml")
    lwait(g, 5, 4)
    g("v_lshlrev_b32 v21, 10, v3")
    g("s_lshl_b32 s4, s74, 14")
    g("s_lshl_b32 s5, s75, 8")
    g("s_add_u32 s4, s4, s5")
    g("s_lshl_b32 s5, s76, 3")
    g("s_add_u32 s4, s4, s5")
    g(f"s_add_u32 s4, s4, {ML_OFF}")
    g("s_mov_b64 exec, 0xffff")
    g("buffer_store_dwordx2 v[58:59], v21, s[64:67], s4 offen sc1")
    g("s_mov_b64 exec, -1")
    g("LC_noml:")
    stamp(g, 6)
    lwait(g, 5, 4)
    lwait(g, 6, 4, 1)
    stamp(g, 18)
    g("v_lshlrev_b32 v36, 11, v41")
    g("v_lshl_add_u32 v36, v2, 4, v36")
    g("s_cmp_ge_u32 s2, 224")
    g("s_cbranch_scc1 LC_nf3")
    g("s_lshl_b32 s7, s2, 13")
    g("s_lshl_b32 s5, s3, 9")
    g("s_add_u32 s7, s7, s5")
    g(f"s_add_u32 s7, s7, {YPART_OFF}")
    g("v_and_b32 v22, 31, v1")
    g("v_lshlrev_b32 v22, 2, v22")
    g(f"v_add_u32 v22, {L_HB}, v22")
    for w in range(4):
        g(f"ds_read_b32 v{24+w}, v22 offset:{w*256}")
        g(f"ds_read_b32 v{28+w}, v22 offset:{w*256+128}")
    g("v_lshlrev_b32 v23, 10, v42")
    g("v_lshl_add_u32 v23, v41, 3, v23")
    g("s_lshl_b32 s4, s3, 8")
    g(f"s_add_u32 s4, s4, {L_WD}")
    g("v_add_u32 v23, s4, v23")
    for mt in range(8):
        g(f"ds_read_b64_tr_b16 v[{128+4*mt}:{129+4*mt}], v23 offset:{mt*32}")
    g("s_waitcnt lgkmcnt(8)")
    g("v_add_f32 v24, v24, v25\nv_add_f32 v26, v26, v27\nv_add_f32 v24, v24, v26")
    g("v_add_f32 v28, v28, v29\nv_add_f32 v30, v30, v31\nv_add_f32 v28, v28, v30")
    rb(g, 24, 25)
    rb(g, 28, 25)
    silu_inplace(g, 24, 25)
    rb(g, 24, 25)
    g("v_mul_f32 v24, v24, v28")
    g("v_cvt_pk_bf16_f32 v24, v24, v24")
    g("v_and_b32 v22, 31, v1")
    g("v_lshlrev_b32 v22, 1, v22")
    g("s_lshl_b32 s4, s3, 6")
    g(f"s_add_u32 s4, s4, {L_HF}")
    g("v_add_u32 v22, s4, v22")
    g("ds_write_b16 v22, v24")
    g("v_lshlrev_b32 v22, 4, v41")
    g("v_and_b32 v23, 1, v2")
    g("v_lshl_add_u32 v22, v23, 3, v22")
    g("v_add_u32 v22, s4, v22")
    g("s_waitcnt lgkmcnt(0)")
    g("ds_read_b64 v[32:33], v22")
    g("v_mov_b32 v34, 0\nv_mov_b32 v35, 0")
    for mt in range(8):
        g(f"v_mov_b32 v{130+4*mt}, v{128+4*mt}")
        g(f"v_mov_b32 v{131+4*mt}, v{129+4*mt}")
    g("v_cmp_gt_u32 vcc, 2, v2")
    g("s_waitcnt lgkmcnt(0)")
    g("v_cndmask_b32 v32, 0, v32, vcc")
    g("v_cndmask_b32 v33, 0, v33, vcc")
    g("s_nop 1")
    for mt in range(8):
        g(f"v_mfma_f32_16x16x32_bf16 v[{160+4*mt}:{163+4*mt}], v[{128+4*mt}:{131+4*mt}], v[32:35], 0")
    g("s_nop 7")
    g("v_cmp_gt_u32 vcc, 4, v3")
    g("s_and_saveexec_b64 s[10:11], vcc")
    for mt in range(8):
        g(f"buffer_store_dwordx4 v[{160+4*mt}:{163+4*mt}], v36, s[64:67], s7 offen offset:{mt*64} sc1")
    g("s_mov_b64 exec, s[10:11]")
    g("LC_nf3:")
    stamp(g, 19)
    g("v_and_b32 v5, 31, v1")
    g("v_lshlrev_b32 v5, 3, v5")
    g("s_lshl_b32 s80, s68, 10")
    g("s_lshl_b32 s5, s3, 8")
    g("s_add_u32 s80, s80, s5")
    g(f"s_add_u32 s80, s80, {ML_OFF}")
    g("v_lshlrev_b32 v6, 1, v1")
    g("s_lshl_b32 s81, s68, 17")
    g("s_lshl_b32 s5, s69, 14")
    g("s_add_u32 s81, s81, s5")
    g("s_lshl_b32 s5, s3, 12")
    g("s_add_u32 s81, s81, s5")
    g(f"s_add_u32 s81, s81, {OPART_OFF}")
    g("s_mov_b32 s82, 0")
    g("LC_pollml:")
    g("s_sleep 2")
    g("buffer_load_dwordx2 v[8:9], v5, s[64:67], s80 offen sc1")
    g("s_waitcnt vmcnt(0)")
    g("v_add_f32 v10, v8, v9")
    g("v_cmp_u_f32 vcc, v10, v10")
    g("s_add_u32 s82, s82, 1")
    g(f"s_cmp_gt_u32 s82, {SPIN_MAX}")
    g("s_cbranch_scc1 LC_pollO")
    g("s_cbranch_vccnz LC_pollml")
    g("LC_pollO:")
    stamp(g, 14)
    for kc in range(32):
        g(f"buffer_load_ushort v{64+kc}, v6, s[64:67], s81 offen offset:{kc*128} sc1")
    g("v_mov_b32 v17, v8")
    dpp_reduce(g, "v_max_f32", 17, 72)
    g("v_subrev_f32 v17, s72, v8")
    g("v_mul_f32 v17, 0x3fb8aa3b, v17")
    g("v_exp_f32 v17, v17")
    g("s_nop 0")
    g("v_mul_f32 v10, v17, v9")
    dpp_reduce(g, "v_add_f32", 10, 73)
    g("v_mov_b32 v20, s73")
    g("v_mul_f32 v20, 0.5, v20")
    g("v_rcp_f32 v20, v20")
    g("v_and_b32 v21, 0x23, v1")
    g("v_bfe_u32 v22, v1, 2, 2")
    g("v_lshl_add_u32 v21, v22, 3, v21")
    g("v_bfe_u32 v22, v1, 4, 1")
    g("v_lshl_add_u32 v21, v22, 2, v21")
    g("v_lshlrev_b32 v21, 1, v21")
    g("s_lshl_b32 s12, s3, 7")
    g(f"s_add_u32 s12, s12, {L_OL}")
    g("v_add_u32 v21, s12, v21")
    g("v_mov_b32 v11, 0")
    for q in range(4):
        for i in range(8):
            g(f"v_readlane_b32 s{4+i}, v17, {8*q+i}")
        g(f"s_waitcnt vmcnt({24-8*q})")
        for i in range(8):
            kc = 8 * q + i
            g(f"v_lshlrev_b32 v{64+kc}, 16, v{64+kc}")
            g(f"v_fmac_f32 v11, s{4+i}, v{64+kc}")
    stamp(g, 15)
    g("v_mul_f32 v11, v11, v20")
    g("v_cvt_pk_bf16_f32 v11, v11, v11")
    g("ds_write_b16 v21, v11")
    g(f"v_add_u32 v24, {L_WUV}, v43")
    for dt in range(8):
        g(f"v_xor_b32 v25, {dt}, v42")
        g("v_lshl_add_u32 v25, v25, 5, v24")
        for s_ in range(2):
            for half in range(2):
                rr = 128 + dt * 8 + s_ * 4 + half * 2
                g(f"ds_read_b64_tr_b16 v[{rr}:{rr+1}], v25 offset:{s_*8192 + half*4096}")
        if dt % 2 == 1:
            g("s_waitcnt lgkmcnt(4)")
    g("s_waitcnt lgkmcnt(0)")
    signal(g, 8)
    g("v_lshlrev_b32 v22, 7, v41")
    g("v_lshl_add_u32 v22, v2, 4, v22")
    g(f"v_add_u32 v22, {L_OL}, v22")
    lwait(g, 8, 4)
    stamp(g, 7)
    g("ds_read_b128 v[44:47], v22")
    g("ds_read_b128 v[48:51], v22 offset:64")
    g("s_waitcnt lgkmcnt(0)")
    for dt in range(8):
        g(f"v_mfma_f32_16x16x32_bf16 v[{96+4*dt}:{99+4*dt}], v[{128+8*dt}:{131+8*dt}], v[44:47], 0")
        g(f"v_mfma_f32_16x16x32_bf16 v[{96+4*dt}:{99+4*dt}], v[{132+8*dt}:{135+8*dt}], v[48:51], v[{96+4*dt}:{99+4*dt}]")
    g("s_nop 7")
    for dt in range(8):
        g(f"v_cvt_pk_bf16_f32 v{44+2*dt}, v{96+4*dt}, v{97+4*dt}")
        g(f"v_cvt_pk_bf16_f32 v{45+2*dt}, v{98+4*dt}, v{99+4*dt}")
    tr_pipeline(44, 192, 64, 18, lambda ct: ct * 32)
    g("s_lshl_b32 s4, s2, 13")
    g("s_lshl_b32 s5, s3, 9")
    g("s_add_u32 s4, s4, s5")
    g(f"s_add_u32 s6, s4, {SPART_OFF}")
    g("s_nop 7")
    g("v_cmp_gt_u32 vcc, 4, v3")
    g("s_and_saveexec_b64 s[10:11], vcc")
    for mt in range(8):
        g(f"buffer_store_dwordx4 v[{192+4*mt}:{195+4*mt}], v36, s[64:67], s6 offen offset:{mt*64} sc1")
    g("s_mov_b64 exec, s[10:11]")
    stamp(g, 8)
    g("v_mov_b32 v8, 0")
    for i in range(4):
        g(f"v_lshlrev_b32 v9, 16, v{236+i}")
        g(f"v_lshlrev_b32 v10, 16, v{240+i}")
        g("v_fmac_f32 v8, v9, v10")
        g(f"v_and_b32 v9, 0xffff0000, v{236+i}")
        g(f"v_and_b32 v10, 0xffff0000, v{240+i}")
        g("v_fmac_f32 v8, v9, v10")
    dpp_reduce(g, "v_add_f32", 8, 72)
    g("v_mov_b32 v13, s72")
    rb(g, 13, 12)
    g("v_mul_f32 v13, 0xbfb8aa3b, v13")
    g("v_exp_f32 v13, v13")
    g("s_nop 0")
    g("v_add_f32 v13, 1.0, v13")
    g("v_rcp_f32 v13, v13")
    g("s_nop 0")
    rb(g, 13, 12)
    g("v_lshlrev_b32 v245, 16, v245")
    g("v_lshlrev_b32 v244, 16, v244")
    g("s_lshr_b32 s80, s2, 6")
    g("s_and_b32 s81, s2, 63")
    g("v_and_b32 v4, 7, v1")
    g("v_lshlrev_b32 v4, 2, v4")
    g("v_lshrrev_b32 v5, 3, v1")
    g("v_lshl_add_u32 v4, v5, 13, v4")
    g("s_lshl_b32 s4, s3, 19")
    g("s_lshl_b32 s5, s80, 11")
    g("s_add_u32 s4, s4, s5")
    g("s_lshl_b32 s5, s81, 5")
    g("s_add_u32 s83, s4, s5")
    g("s_waitcnt vmcnt(0)")
    signal(g, 9)
    g("s_cmp_lg_u32 s3, 0")
    g("s_cbranch_scc1 LC_nofl")
    lwait(g, 9, 4)
    g("v_lshlrev_b32 v5, 10, v1")
    g("v_mov_b32 v6, 1")
    g("s_lshl_b32 s4, s2, 2")
    g(f"s_add_u32 s4, s4, {FLC_OFF}")
    g("s_mov_b64 exec, 0xffffffff")
    g("buffer_store_dword v6, v5, s[64:67], s4 offen sc1")
    g("s_mov_b64 exec, -1")
    g("LC_nofl:")
    g("s_and_b32 s4, s2, 31")
    g("s_lshl_b32 s4, s4, 10")
    g("s_lshl_b32 s5, s3, 8")
    g("s_add_u32 s4, s4, s5")
    g(f"s_add_u32 s4, s4, {FLC_OFF}")
    g("v_lshlrev_b32 v5, 2, v1")
    g("s_mov_b32 s82, 0")
    g("LC_pollC:")
    g("s_sleep 1")
    g("buffer_load_dword v6, v5, s[64:67], s4 offen sc1")
    g("s_waitcnt vmcnt(0)")
    g("v_cmp_ne_u32 vcc, 1, v6")
    g("s_add_u32 s82, s82, 1")
    g(f"s_cmp_gt_u32 s82, {SPIN_MAX}")
    g("s_cbranch_scc1 LC_pollC2")
    g("s_cbranch_vccnz LC_pollC")
    g("LC_pollC2:")
    stamp(g, 20)
    g(f"s_add_u32 s5, s83, {SPART_OFF}")
    g(f"s_add_u32 s6, s83, {YPART_OFF}")
    for i in range(8):
        g(f"buffer_load_dword v{16+i}, v4, s[64:67], s5 offen sc1")
        g("s_add_u32 s5, s5, 65536")
    for i in range(4, 8):
        g(f"v_mov_b32 v{24+i}, 0")
    for i in range(8):
        if i == 4:
            g("s_cmp_eq_u32 s3, 3")
            g("s_cbranch_scc1 LC_y8")
        g(f"buffer_load_dword v{24+i}, v4, s[64:67], s6 offen sc1")
        g("s_add_u32 s6, s6, 65536")
    g("LC_y8:")
    g("s_waitcnt vmcnt(0)")
    for i in range(1, 8):
        g(f"v_add_f32 v16, v16, v{16+i}")
        g(f"v_add_f32 v24, v24, v{24+i}")
    stamp(g, 16)
    for msk in (8, 16):
        g(f"ds_swizzle_b32 v17, v16 offset:{(msk<<10)|0x1f}")
        g(f"ds_swizzle_b32 v25, v24 offset:{(msk<<10)|0x1f}")
        g("s_waitcnt lgkmcnt(0)")
        g("v_add_f32 v16, v16, v17")
        g("v_add_f32 v24, v24, v25")
    g("v_mov_b32 v17, v16")
    g("v_mov_b32 v25, v24")
    g("s_nop 1")
    g("v_permlane32_swap_b32 v16, v17")
    g("v_permlane32_swap_b32 v24, v25")
    g("s_nop 1")
    g("v_add_f32 v16, v16, v17")
    g("v_add_f32 v24, v24, v25")
    g("v_and_b32 v11, 7, v1")
    g("v_lshlrev_b32 v11, 2, v11")
    g(f"v_add_u32 v11, {L_FIN}, v11")
    g("s_lshl_b32 s4, s3, 6")
    g("v_add_u32 v12, s4, v11")
    g("ds_write_b32 v12, v16")
    g("ds_write_b32 v12, v24 offset:32")
    g("s_waitcnt lgkmcnt(0)")
    signal(g, 10)
    g("s_cmp_lg_u32 s3, 0")
    g("s_cbranch_scc1 L_done")
    lwait(g, 10, 4)
    for w in range(4):
        g(f"ds_read_b32 v{64+w}, v11 offset:{w*64}")
        g(f"ds_read_b32 v{96+w}, v11 offset:{w*64+32}")
    srd(g, 48, 38, 4096)
    g("s_waitcnt lgkmcnt(0)")
    g("v_add_f32 v64, v64, v65\nv_add_f32 v66, v66, v67\nv_add_f32 v64, v64, v66")
    g("v_add_f32 v96, v96, v97\nv_add_f32 v98, v98, v99\nv_add_f32 v96, v96, v98")
    rb(g, 64, 12)
    rb(g, 96, 12)
    g("v_mul_f32 v96, v96, v13")
    rb(g, 96, 12)
    g("v_add_f32 v96, v245, v96")
    rb(g, 96, 12)
    silu_inplace(g, 96, 14)
    rb(g, 96, 12)
    g("v_mul_f32 v64, v64, v96")
    rb(g, 64, 12)
    g("v_add_f32 v64, v244, v64")
    g("v_cvt_pk_bf16_f32 v64, v64, v64")
    g("s_mov_b64 exec, 0xff")
    g("buffer_store_short v64, v246, s[48:51], s78 offen")
    stamp_flush(g, 0)

def kdesc(g, name, vgpr):
    g.raw(".p2align 6")
    g.raw(f".amdhsa_kernel {name}")
    g.raw(f"  .amdhsa_next_free_vgpr {vgpr}")
    g.raw("  .amdhsa_next_free_sgpr 102")
    g.raw(f"  .amdhsa_accum_offset {vgpr}")
    g.raw("  .amdhsa_group_segment_fixed_size 0")
    g.raw("  .amdhsa_kernarg_size 112")
    g.raw("  .amdhsa_user_sgpr_count 2")
    g.raw("  .amdhsa_user_sgpr_kernarg_segment_ptr 1")
    g.raw("  .amdhsa_system_sgpr_workgroup_id_x 1")
    g.raw("  .amdhsa_float_denorm_mode_32 3")
    g.raw(".end_amdhsa_kernel")

def main(out):
    g = G()
    g.L = [f"; @launch kernel=k0_kernel grid=(256,1,1) block=(256,1,1) lds={K0_LDS}",
           f"; @launch kernel=k1_kernel grid=(256,1,1) block=(512,1,1) lds={LDS_TOTAL}" if not os.environ.get("ONLYK0") else ";",
           '.amdgcn_target "amdgcn-amd-amdhsa--gfx950"', ".text"]
    gen_k0(g)
    gen_kernel(g)
    g.raw('.section .rodata,"a"')
    kdesc(g, "k0_kernel", 136)
    kdesc(g, "k1_kernel", 256)
    open(out, "w").write("\n".join(g.L) + "\n")

if __name__ == "__main__":
    if len(sys.argv) > 2 and sys.argv[2] == "debug":
        DEBUG = True
    main(sys.argv[1])
```

```python
import sys, os
NAME = "recurrent_scan__compressed_kv_cla__moe_arch_mod__decode"

XN_OFF   = 0x0
QP_OFF   = 0x140000
QABS_OFF = 0x10000
FFN_OFF  = 0x40000
OPART_OFF= 0x200000
SPART_OFF= 0x600000
YPART_OFF= 0x800000
ML_OFF   = 0xA00000
FLC_OFF  = 0xA20000
FLY_OFF  = 0xA40000
STAMP_OFF= 0xC00000
WS_SIZE  = 0x1000000
DEBUG = False
SPIN_MAX = 200000

RS = 1056
R0, S1, XR, S2 = 0, 135168, 151552, 155648
LDS_TOTAL = 163840
L_WQ, L_FF, L_XN, L_QX = R0, S1, XR, S2
L_CKV, L_QA, L_P, L_MX, L_LS = R0, S1, S2, S2 + 4096, S2 + 5120
L_WO, L_WUV, L_WD, L_OL, L_HB, L_HF, L_FIN = R0, S1, S1, XR, XR + 512, XR + 1536, XR + 2048

class G:
    def __init__(self):
        self.L = []
    def __call__(self, s):
        for line in s.strip("\n").split("\n"):
            self.L.append("    " + line.strip() if not line.strip().endswith(":") else line.strip())
    def raw(self, s):
        self.L.append(s)

def srd(g, d, base, size):
    g(f"s_mov_b32 s{d}, s{base}")
    g(f"s_and_b32 s{d+1}, s{base+1}, 0xffff")
    g(f"s_mov_b32 s{d+2}, 0x{size:x}")
    g(f"s_mov_b32 s{d+3}, 0x00020000")

def dpp_reduce(g, op, v, sdst):
    for sh in (1, 2, 4, 8):
        g("s_nop 1")
        g(f"{op}_dpp v{v}, v{v}, v{v} row_shr:{sh} row_mask:0xf bank_mask:0xf")
    g("s_nop 1")
    g(f"{op}_dpp v{v}, v{v}, v{v} row_bcast:15 row_mask:0xa bank_mask:0xf")
    g("s_nop 1")
    g(f"{op}_dpp v{v}, v{v}, v{v} row_bcast:31 row_mask:0xc bank_mask:0xf")
    g("s_nop 1")
    g(f"v_readlane_b32 s{sdst}, v{v}, 63")
    g("s_nop 3")

def rb(g, v, tmp):
    g(f"v_cvt_pk_bf16_f32 v{tmp}, v{v}, v{v}")
    g(f"v_lshlrev_b32 v{v}, 16, v{tmp}")

NSTAMP = 32
def stamp(g, i):
    if DEBUG:
        g("s_memrealtime s[84:85]")
        g("s_waitcnt lgkmcnt(0)")
        g(f"v_writelane_b32 v247, s84, {i}")
HST = bool(os.environ.get("HST"))
HWG = int(os.environ.get("HWG", "0"))
def stamp_flush(g, off):
    if DEBUG and HST:
        if off != 0:
            return
        g("s_waitcnt vmcnt(0) lgkmcnt(0)")
        stamp(g, 31)
        g(f"s_cmp_lg_u32 s2, {HWG}")
        g("s_cbranch_scc1 L_done")
        g("s_mov_b32 s60, s40")
        g("s_and_b32 s61, s41, 0xffff")
        g("s_mov_b32 s62, 256")
        g("s_mov_b32 s63, 0x00020000")
        g("s_mov_b64 exec, 1")
        g("v_mov_b32 v1, 0")
        for k, i in enumerate([0, 1, 2, 3, 4, 5, 17, 6, 14, 15, 7, 8, 20, 31]):
            g(f"v_readlane_b32 s4, v247, {i}")
            g("v_readlane_b32 s5, v247, 0")
            g("s_nop 3")
            g("s_sub_u32 s4, s4, s5")
            g("v_mov_b32 v2, s4")
            g(f"buffer_store_dword v2, v1, s[60:63], 0 offen offset:{8+4*k}")
        return
    if DEBUG:
        g("s_waitcnt vmcnt(0) lgkmcnt(0)")
        stamp(g, 31)
        g("s_memtime s[84:85]")
        g("s_waitcnt lgkmcnt(0)")
        g("s_sub_u32 s84, s84, s86")
        g("v_writelane_b32 v247, s84, 30")
        g("s_lshl_b32 s6, s2, 8")
        g(f"s_add_u32 s6, s6, {STAMP_OFF + off}")
        g("s_mov_b64 exec, 0xffffffff")
        g("v_and_b32 v1, 63, v0")
        g("v_lshlrev_b32 v1, 2, v1")
        g("buffer_store_dword v247, v1, s[64:67], s6 offen")

def layernorm_row(g, vx, vt, s0):
    f = [vt + i for i in range(8)]
    T = vt + 8
    for i in range(4):
        g(f"v_lshlrev_b32 v{f[2*i]}, 16, v{vx+i}")
        g(f"v_and_b32 v{f[2*i+1]}, 0xffff0000, v{vx+i}")
    g(f"v_add_f32 v{T}, v{f[0]}, v{f[1]}")
    for i in range(2, 8):
        g(f"v_add_f32 v{T}, v{T}, v{f[i]}")
    dpp_reduce(g, "v_add_f32", T, s0)
    g(f"v_mov_b32 v{T+1}, s{s0}")
    g(f"v_mul_f32 v{T+1}, 0x3b000000, v{T+1}")
    g(f"v_sub_f32 v{T+2}, v{f[0]}, v{T+1}")
    g(f"v_mul_f32 v{T}, v{T+2}, v{T+2}")
    for i in range(1, 8):
        g(f"v_sub_f32 v{T+2}, v{f[i]}, v{T+1}")
        g(f"v_fmac_f32 v{T}, v{T+2}, v{T+2}")
    dpp_reduce(g, "v_add_f32", T, s0)
    g(f"v_mov_b32 v{T+2}, s{s0}")
    g(f"v_mul_f32 v{T+2}, 0x3b000000, v{T+2}")
    rb(g, T + 1, T + 3)
    rb(g, T + 2, T + 3)
    g(f"v_add_f32 v{T+2}, 0x3727c5ac, v{T+2}")
    rb(g, T + 2, T + 3)
    g(f"v_sqrt_f32 v{T+2}, v{T+2}")
    g("s_nop 0")
    rb(g, T + 2, T + 3)
    g(f"v_rcp_f32 v{T+3}, v{T+2}")
    g("s_nop 0")
    for i in range(8):
        g(f"v_sub_f32 v{f[i]}, v{f[i]}, v{T+1}")
        rb(g, f[i], T + 4)
        g(f"v_mul_f32 v{T+4}, v{f[i]}, v{T+3}")
        g(f"v_fma_f32 v{T+5}, -v{T+4}, v{T+2}, v{f[i]}")
        g(f"v_fma_f32 v{f[i]}, v{T+5}, v{T+3}, v{T+4}")
        rb(g, f[i], T + 4)

def silu_inplace(g, v, t):
    g(f"v_mul_f32 v{t}, 0xbfb8aa3b, v{v}")
    g(f"v_exp_f32 v{t}, v{t}")
    g("s_nop 0")
    g(f"v_add_f32 v{t}, 1.0, v{t}")
    g(f"v_rcp_f32 v{t}, v{t}")
    g("s_nop 0")
    g(f"v_mul_f32 v{v}, v{v}, v{t}")


K0_WQ, K0_FF, K0_XN = 0, 16384, 32768
K0_LDS = 36864
def gen_k0(g):
    name = "k0_kernel"
    g.raw(f".globl {name}")
    g.raw(".p2align 8")
    g.raw(f".type {name},@function")
    g.raw(f"{name}:")
    g("s_cmp_ge_u32 s2, 256")
    g("s_cbranch_scc1 K0_done")
    if HST:
        g("s_memrealtime s[90:91]")
    g("s_load_dwordx16 s[16:31], s[0:1], 0")
    g("s_load_dwordx8 s[32:39], s[0:1], 64")
    g("s_load_dwordx4 s[40:43], s[0:1], 96")
    g("v_lshrrev_b32 v1, 6, v0")
    g("v_and_b32 v0, 0xff, v0")
    g("v_readfirstlane_b32 s3, v1")
    g("v_and_b32 v1, 63, v0")
    g("v_lshrrev_b32 v2, 4, v1")
    g("v_and_b32 v3, 15, v1")
    g("v_lshrrev_b32 v40, 2, v3")
    g("v_and_b32 v41, 3, v3")
    g("v_lshlrev_b32 v4, 4, v1")
    g("s_and_b32 s68, s2, 7")
    g("s_lshl_b32 s68, s68, 2")
    g("s_lshr_b32 s4, s2, 3")
    g("s_and_b32 s4, s4, 3")
    g("s_add_u32 s68, s68, s4")
    g("s_lshr_b32 s69, s2, 5")
    g("s_mov_b32 s4, 0x12492493")
    g("s_mul_hi_u32 s71, s2, s4")
    g("s_mul_i32 s4, s71, 14")
    g("s_sub_u32 s70, s2, s4")
    g("s_waitcnt lgkmcnt(0)")
    srd(g, 64, 42, WS_SIZE)
    srd(g, 44, 20, 512 * 8192)
    srd(g, 48, 32, 512 * 3584)
    srd(g, 52, 34, 512 * 3584)
    srd(g, 56, 16, 4096)
    g("s_lshl_b32 s4, s3, 10")
    g("buffer_load_dwordx4 v[8:11], v4, s[56:59], s4 offen")
    g("s_and_b32 s5, s3, 1")
    g("s_lshl_b32 s5, s5, 3")
    g("v_lshlrev_b32 v5, 1, v2")
    g("v_add_u32 v5, s5, v5")
    g("v_xor_b32 v5, v5, v3")
    g("v_lshlrev_b32 v5, 4, v5")
    g("v_lshl_add_u32 v6, v2, 13, v5")
    g("s_lshl_b32 s6, s68, 8")
    g("s_lshl_b32 s7, s69, 19")
    g("s_add_u32 s6, s6, s7")
    g("s_lshl_b32 s7, s3, 15")
    g("s_add_u32 s6, s6, s7")
    g("s_lshl_b32 s8, s3, 10")
    for n in range(4):
        g("s_mov_b32 m0, s8")
        g("s_add_u32 s8, s8, 4096")
        g("buffer_load_dwordx4 v6, s[44:47], s6 offen nt lds")
        g("s_add_u32 s6, s6, 131072")
    g("s_cmp_ge_u32 s2, 224")
    g("s_cbranch_scc1 K0_noffn")
    g("s_mov_b32 s8, 3584")
    g("v_mul_lo_u32 v12, v2, s8")
    g("v_add_u32 v12, v12, v5")
    g("s_lshl_b32 s7, s70, 8")
    g("s_lshl_b32 s9, s71, 5")
    g("s_lshl_b32 s10, s3, 2")
    g("s_add_u32 s9, s9, s10")
    g("s_mul_i32 s9, s9, 3584")
    g("s_add_u32 s7, s7, s9")
    g("s_lshl_b32 s8, s3, 10")
    g(f"s_add_u32 s8, s8, {K0_FF}")
    for mat in range(2):
        for ii in range(2):
            g(f"s_add_u32 s10, s8, {mat*8192 + ii*4096}")
            g("s_mov_b32 m0, s10")
            g(f"s_add_u32 s9, s7, {ii*16*3584}")
            g(f"buffer_load_dwordx4 v12, s[{48+4*mat}:{51+4*mat}], s9 offen nt lds")
    g("K0_noffn:")
    if os.environ.get("PFCKV"):
        srd(g, 60, 18, 16 << 20)
        g("s_lshr_b32 s74, s2, 3")
        g("s_and_b32 s74, s74, 1")
        g("s_and_b32 s4, s2, 7")
        g("s_lshr_b32 s5, s2, 4")
        g("s_lshl_b32 s5, s5, 3")
        g("s_or_b32 s4, s4, s5")
        g("s_lshl_b32 s7, s4, 17")
        g("s_lshl_b32 s8, s74, 16")
        g("s_add_u32 s7, s7, s8")
        g("s_lshl_b32 s8, s3, 14")
        g("s_add_u32 s7, s7, s8")
        for n in range(16):
            g(f"buffer_load_dwordx4 v[{64+4*(n&3)}:{67+4*(n&3)}], v4, s[60:63], s7 offen" + os.environ["PFCKV"].replace("_", " "))
            g("s_add_u32 s7, s7, 1024")
    g("s_waitcnt vmcnt(4)")
    layernorm_row(g, 8, 20, 72)
    for i in range(4):
        g(f"v_cvt_pk_bf16_f32 v{36+i}, v{20+2*i}, v{21+2*i}")
    g("v_lshrrev_b32 v14, 2, v1")
    g("v_lshlrev_b32 v14, 6, v14")
    g("v_and_b32 v15, 1, v1")
    g("v_lshl_add_u32 v14, v15, 5, v14")
    g("v_bfe_u32 v15, v1, 1, 1")
    g("v_lshl_add_u32 v14, v15, 3, v14")
    g("s_lshl_b32 s4, s3, 10")
    g(f"s_add_u32 s4, s4, {K0_XN}")
    g("v_add_u32 v14, s4, v14")
    g("ds_write_b64 v14, v[36:37]")
    g("ds_write_b64 v14, v[38:39] offset:16")
    g("s_cmp_lg_u32 s2, 0")
    g("s_cbranch_scc1 K0_noxn")
    g("s_lshl_b32 s4, s3, 10")
    g("buffer_store_dwordx4 v[36:39], v4, s[64:67], s4 offen")
    g("K0_noxn:")
    g("v_and_b32 v42, 1, v2")
    g("v_lshl_add_u32 v42, v42, 2, v40")
    g("v_lshl_add_u32 v43, v2, 2, v40")
    g("v_lshlrev_b32 v43, 8, v43")
    g("v_lshl_add_u32 v43, v41, 3, v43")
    g("s_lshl_b32 s4, s3, 1")
    g("v_xor_b32 v44, s4, v42")
    g("v_lshl_add_u32 v44, v44, 5, v43")
    g("s_add_u32 s4, s4, 1")
    g("v_xor_b32 v45, s4, v42")
    g("v_lshl_add_u32 v45, v45, 5, v43")
    g("v_lshlrev_b32 v48, 10, v41")
    g("v_lshl_add_u32 v48, v2, 4, v48")
    g(f"v_add_u32 v48, {K0_XN}, v48")
    g("s_waitcnt vmcnt(0) lgkmcnt(0)")
    g("s_barrier")
    g("v_mov_b32 v16, -1\nv_mov_b32 v17, -1\nv_mov_b32 v18, -1\nv_mov_b32 v19, -1")
    g("v_lshlrev_b32 v13, 4, v0")
    g("s_lshl_b32 s7, s2, 15")
    g(f"s_add_u32 s7, s7, {OPART_OFF}")
    g("s_cmp_lg_u32 s3, 0")
    g("s_cbranch_scc1 K0_noml")
    g("v_mov_b32 v20, 0\nv_mov_b32 v21, 0\nv_mov_b32 v22, 0\nv_mov_b32 v23, 0")
    g("s_mov_b64 exec, 0xffffffff")
    g("s_lshl_b32 s7, s2, 9")
    g(f"s_add_u32 s8, s7, {ML_OFF}")
    g("buffer_store_dwordx4 v[16:19], v13, s[64:67], s8 offen")
    g(f"s_add_u32 s8, s7, {QABS_OFF}")
    g("buffer_store_dwordx4 v[16:19], v13, s[64:67], s8 offen")
    g(f"s_add_u32 s8, s7, {FLC_OFF}")
    g("buffer_store_dwordx4 v[20:23], v13, s[64:67], s8 offen")
    g(f"s_add_u32 s8, s7, {FLY_OFF}")
    g("buffer_store_dwordx4 v[20:23], v13, s[64:67], s8 offen")
    g("s_mov_b64 exec, -1")
    g("K0_noml:")
    g("s_lshl_b32 s4, s69, 7")
    g("v_add_u32 v52, s4, v48")
    g("ds_read_b128 v[96:99], v52")
    g("ds_read_b128 v[100:103], v52 offset:64")
    for d in range(2):
        for s_ in range(2):
            for half in range(2):
                rr = 104 + (d * 2 + s_) * 4 + half * 2
                g(f"ds_read_b64_tr_b16 v[{rr}:{rr+1}], v{44+d} offset:{K0_WQ + s_*8192 + half*4096}")
    g("s_waitcnt lgkmcnt(0)")
    for d in range(2):
        g(f"v_mfma_f32_16x16x32_bf16 v[{80+4*d}:{83+4*d}], v[{104+8*d}:{107+8*d}], v[96:99], 0")
        g(f"v_mfma_f32_16x16x32_bf16 v[{80+4*d}:{83+4*d}], v[{108+8*d}:{111+8*d}], v[100:103], v[{80+4*d}:{83+4*d}]")
    g("v_lshlrev_b32 v51, 9, v41")
    g("v_lshl_add_u32 v51, v2, 4, v51")
    g("s_lshl_b32 s4, s68, 14")
    g("s_lshl_b32 s5, s69, 11")
    g("s_add_u32 s4, s4, s5")
    g("s_lshl_b32 s5, s3, 7")
    g("s_add_u32 s4, s4, s5")
    g(f"s_add_u32 s4, s4, {QP_OFF}")
    g("s_nop 7")
    g("v_cmp_gt_u32 vcc, 4, v3")
    g("s_and_saveexec_b64 s[10:11], vcc")
    for d in range(2):
        g(f"buffer_store_dwordx4 v[{80+4*d}:{83+4*d}], v51, s[64:67], s4 offen offset:{64*d}")
    g("s_mov_b64 exec, s[10:11]")
    g("s_cmp_ge_u32 s2, 224")
    g("s_cbranch_scc1 K0_pf" if os.environ.get("PFEND") else "s_cbranch_scc1 K0_done")
    g("s_lshl_b32 s4, s71, 6")
    g("v_add_u32 v52, s4, v48")
    g("ds_read_b128 v[96:99], v52")
    for mat in range(2):
        for d in range(2):
            for half in range(2):
                rr = 100 + (mat * 2 + d) * 4 + half * 2
                g(f"ds_read_b64_tr_b16 v[{rr}:{rr+1}], v{44+d} offset:{K0_FF + mat*8192 + half*4096}")
    g("s_waitcnt lgkmcnt(0)")
    for mat in range(2):
        for d in range(2):
            q = mat * 2 + d
            g(f"v_mfma_f32_16x16x32_bf16 v[{120+4*q}:{123+4*q}], v[{100+4*q}:{103+4*q}], v[96:99], 0")
    g("s_mov_b32 s4, 7168")
    g("v_mul_lo_u32 v54, v41, s4")
    g("v_lshl_add_u32 v54, v2, 4, v54")
    g("s_mul_i32 s4, s71, 57344")
    g("s_lshl_b32 s5, s70, 9")
    g("s_add_u32 s4, s4, s5")
    g("s_lshl_b32 s5, s3, 7")
    g("s_add_u32 s4, s4, s5")
    g(f"s_add_u32 s4, s4, {FFN_OFF}")
    g("s_nop 7")
    g("v_cmp_gt_u32 vcc, 4, v3")
    g("s_and_saveexec_b64 s[10:11], vcc")
    for mat in range(2):
        g(f"s_add_u32 s5, s4, {mat*28672}")
        for d in range(2):
            q = mat * 2 + d
            g(f"buffer_store_dwordx4 v[{120+4*q}:{123+4*q}], v54, s[64:67], s5 offen offset:{64*d}")
    g("s_mov_b64 exec, s[10:11]")
    if os.environ.get("PFEND"):
        g("K0_pf:")
        srd(g, 60, 18, 16 << 20)
        g("s_lshr_b32 s74, s2, 3")
        g("s_and_b32 s74, s74, 1")
        g("s_and_b32 s4, s2, 7")
        g("s_lshr_b32 s5, s2, 4")
        g("s_lshl_b32 s5, s5, 3")
        g("s_or_b32 s4, s4, s5")
        g("s_lshl_b32 s7, s4, 17")
        g("s_lshl_b32 s8, s74, 16")
        g("s_add_u32 s7, s7, s8")
        g("s_lshl_b32 s8, s3, 14")
        g("s_add_u32 s7, s7, s8")
        for n in range(int(os.environ["PFEND"])):
            g(f"buffer_load_dwordx4 v[{64+4*(n&3)}:{67+4*(n&3)}], v4, s[60:63], s7 offen nt")
            g("s_add_u32 s7, s7, 1024")
    if HST:
        g("K0_hst:")
        g(f"s_cmp_lg_u32 s2, {HWG}")
        g("s_cbranch_scc1 K0_done")
        g("s_cmp_lg_u32 s3, 0")
        g("s_cbranch_scc1 K0_done")
        g("s_waitcnt vmcnt(0)")
        g("s_memrealtime s[92:93]")
        srd(g, 60, 40, 256)
        g("s_waitcnt lgkmcnt(0)")
        g("s_mov_b64 exec, 1")
        g("v_mov_b32 v1, 0")
        g("v_mov_b32 v2, s90")
        g("v_mov_b32 v3, s92")
        g("buffer_store_dwordx2 v[2:3], v1, s[60:63], 0 offen")
    g("K0_done:")
    g("s_endpgm")


L_CNT = XR + 1792
_lbl = [0]
def signal(g, idx):
    g("s_mov_b64 exec, 1")
    g(f"ds_add_u32 v250, v251 offset:{4*idx}")
    g("s_mov_b64 exec, -1")
def lwait(g, idx, cnt, sleep=0):
    _lbl[0] += 1
    L = f"LW{_lbl[0]}"
    g(f"{L}:")
    if sleep:
        g(f"s_sleep {sleep}")
    g(f"ds_read_b32 v252, v250 offset:{4*idx}")
    g("s_waitcnt lgkmcnt(0)")
    g("v_readfirstlane_b32 s79, v252")
    g(f"s_cmp_lt_u32 s79, {cnt}")
    g(f"s_cbranch_scc1 {L}")

def gen_kernel(g):
    name = "k1_kernel"
    g.raw(f".globl {name}")
    g.raw(".p2align 8")
    g.raw(f".type {name},@function")
    g.raw(f"{name}:")
    g("s_cmp_ge_u32 s2, 256")
    g("s_cbranch_scc1 L_done")
    stamp(g, 0)
    if DEBUG:
        g("s_memtime s[86:87]")
    g("s_load_dwordx16 s[16:31], s[0:1], 0")
    g("s_load_dwordx8 s[32:39], s[0:1], 64")
    g("s_load_dwordx4 s[40:43], s[0:1], 96")
    g("v_lshrrev_b32 v1, 6, v0")
    g("v_and_b32 v0, 0xff, v0")
    g("v_readfirstlane_b32 s77, v1")
    g("v_and_b32 v1, 63, v0")
    g("v_lshrrev_b32 v2, 4, v1")
    g("v_and_b32 v3, 15, v1")
    g("v_lshrrev_b32 v40, 2, v3")
    g("v_and_b32 v41, 3, v3")
    g("v_lshlrev_b32 v4, 4, v1")
    g(f"v_mov_b32 v250, {L_CNT}")
    g("v_mov_b32 v251, 1")
    g("v_lshlrev_b32 v252, 2, v1")
    g(f"v_add_u32 v252, {L_CNT}, v252")
    g("v_mov_b32 v253, 0")
    g("ds_write_b32 v252, v253")
    g("s_and_b32 s3, s77, 3")
    g("s_lshr_b32 s77, s77, 2")
    g("s_and_b32 s68, s2, 7")
    g("s_lshl_b32 s68, s68, 2")
    g("s_lshr_b32 s4, s2, 3")
    g("s_and_b32 s4, s4, 3")
    g("s_add_u32 s68, s68, s4")
    g("s_lshr_b32 s69, s2, 5")
    g("s_lshr_b32 s74, s2, 3")
    g("s_and_b32 s74, s74, 1")
    g("s_and_b32 s4, s2, 7")
    g("s_lshr_b32 s5, s2, 4")
    g("s_lshl_b32 s5, s5, 3")
    g("s_or_b32 s4, s4, s5")
    g("s_lshr_b32 s75, s4, 5")
    g("s_and_b32 s76, s4, 31")
    g("s_waitcnt lgkmcnt(0)")
    g("s_barrier")
    srd(g, 64, 42, WS_SIZE)
    g("s_cmp_eq_u32 s77, 0")
    g("s_cbranch_scc0 L_loader")
    gen_compute(g)
    g("s_branch L_done")
    g("L_loader:")
    gen_loader(g)
    g("L_done:")
    g("s_endpgm")

def gen_loader(g):
    srd(g, 44, 18, 16 << 20)
    g("s_lshl_b32 s7, s75, 22")
    g("s_lshl_b32 s8, s76, 17")
    g("s_add_u32 s7, s7, s8")
    g("s_lshl_b32 s8, s3, 15")
    g("s_add_u32 s7, s7, s8")
    g(f"s_mul_i32 s8, s3, {32*RS}")
    for n in range(32):
        g("s_mov_b32 m0, s8")
        g(f"s_add_u32 s8, s8, {RS}")
        g("buffer_load_dwordx4 v4, s[44:47], s7 offen nt lds")
        g("s_add_u32 s7, s7, 1024")
    stamp(g, 4)
    g("s_and_b32 s5, s3, 1")
    g("s_lshl_b32 s5, s5, 3")
    g("v_lshlrev_b32 v5, 1, v2")
    g("v_add_u32 v5, s5, v5")
    g("v_xor_b32 v5, v5, v3")
    g("v_lshlrev_b32 v5, 4, v5")
    g("v_lshl_add_u32 v6, v2, 13, v5")
    srd(g, 48, 26, 32 * 131072)
    g("s_lshl_b32 s6, s68, 17")
    g("s_lshl_b32 s7, s3, 15")
    g("s_add_u32 s6, s6, s7")
    NW1 = int(os.environ.get("NW1", "0"))
    def wo_loads(lo, hi, tag):
        for jj in range(8):
            g(f"s_cmp_eq_u32 s69, {jj}")
            g(f"s_cbranch_scc1 LL_wo{tag}{jj}")
        for jj in range(8):
            g(f"LL_wo{tag}{jj}:")
            for n in range(lo, hi):
                r = (n + 4 * jj) & 31
                g(f"s_add_u32 s7, s6, {r*1024}")
                g(f"buffer_load_dwordx4 v[{64+4*r}:{67+4*r}], v4, s[48:51], s7 offen nt")
            g(f"s_branch LL_wod{tag}")
        g(f"LL_wod{tag}:")
    if NW1:
        wo_loads(0, NW1, "a")
    g(f"s_waitcnt vmcnt({NW1})")
    signal(g, 1)
    stamp(g, 5)
    if os.environ.get("WODLY"):
        lwait(g, int(os.environ["WODLY"]), 4, 2)
    wo_loads(NW1, 32, "b")
    srd(g, 44, 24, 512 * 8192)
    g("s_lshl_b32 s6, s68, 8")
    g("s_lshl_b32 s7, s69, 19")
    g("s_add_u32 s6, s6, s7")
    g("s_lshl_b32 s7, s3, 15")
    g("s_add_u32 s6, s6, s7")
    for n in range(4):
        g(f"buffer_load_dwordx4 v[{192+4*n}:{195+4*n}], v6, s[44:47], s6 offen nt")
        g("s_add_u32 s6, s6, 131072")
    stamp(g, 6)
    g("s_waitcnt vmcnt(0)")
    stamp(g, 7)
    lwait(g, 3, 4, 2)
    g("s_lshl_b32 s8, s3, 10")
    g(f"s_add_u32 s8, s8, {L_WUV}")
    g("v_add_u32 v7, s8, v4")
    for n in range(4):
        g(f"ds_write_b128 v7, v[{192+4*n}:{195+4*n}] offset:{n*4096}")
    lwait(g, 11, 4, 2)
    g(f"s_mul_i32 s8, s3, {32*RS}")
    g("v_add_u32 v7, s8, v4")
    for n in range(32):
        g(f"ds_write_b128 v7, v[{64+4*n}:{67+4*n}] offset:{n*RS}")
    g("s_waitcnt lgkmcnt(0)")
    signal(g, 6)
    stamp(g, 8)
    if DEBUG:
        g("s_cmp_lg_u32 s3, 0")
        g("s_cbranch_scc1 L_done")
    stamp_flush(g, 128)

def gen_compute(g):
    if os.environ.get("PRIO"):
        g("s_setprio 3")
    srd(g, 48, 22, 512 * 8192)
    srd(g, 52, 16, 4096)
    g("v_lshlrev_b32 v5, 3, v1")
    g("s_lshl_b32 s4, s68, 14")
    g("s_lshl_b32 s5, s3, 9")
    g("s_add_u32 s4, s4, s5")
    g(f"s_add_u32 s4, s4, {QP_OFF}")
    for p in range(8):
        g(f"buffer_load_dwordx2 v[{96+2*p}:{97+2*p}], v5, s[64:67], s4 offen offset:{2048*p if p < 2 else 0}" if p < 2 else f"buffer_load_dwordx2 v[{96+2*p}:{97+2*p}], v5, s[64:67], s5 offen offset:{2048*(p&1)}")
        if p & 1:
            g(f"s_add_u32 s5, s4, {2048*(p+1)}")
    g("s_lshl_b32 s6, s68, 8")
    g("s_lshl_b32 s7, s69, 6")
    g("s_lshl_b32 s8, s3, 4")
    g("s_add_u32 s7, s7, s8")
    g("v_add_u32 v7, s7, v3")
    g("v_lshlrev_b32 v7, 13, v7")
    g("v_lshl_add_u32 v7, v2, 4, v7")
    g("v_add_u32 v7, s6, v7")
    for ks in range(4):
        g(f"buffer_load_dwordx4 v[{64+4*ks}:{67+4*ks}], v7, s[48:51], 0 offen offset:{64*ks} nt")
    srd(g, 56, 36, 1792 * 1024)
    g("s_lshl_b32 s4, s2, 3")
    g("s_lshl_b32 s5, s3, 1")
    g("s_add_u32 s4, s4, s5")
    g("s_lshl_b32 s4, s4, 10")
    g("s_lshl_b32 s5, s3, 11")
    g(f"s_add_u32 s5, s5, {L_WD}")
    for i in range(2):
        g("s_mov_b32 m0, s5")
        g("s_add_u32 s5, s5, 1024")
        g("buffer_load_dwordx4 v4, s[56:59], s4 offen nt lds")
        g("s_add_u32 s4, s4, 1024")
    g("v_and_b32 v42, 1, v2")
    g("v_lshl_add_u32 v42, v42, 2, v40")
    g("v_lshl_add_u32 v43, v2, 2, v40")
    g("v_lshlrev_b32 v43, 8, v43")
    g("v_lshl_add_u32 v43, v41, 3, v43")
    g("s_lshl_b32 s4, s3, 8")
    g(f"s_add_u32 s4, s4, {L_QX}")
    g("v_lshlrev_b32 v49, 2, v1")
    g("v_add_u32 v49, s4, v49")
    g("v_lshlrev_b32 v50, 8, v41")
    g("v_lshl_add_u32 v50, v2, 4, v50")
    g(f"v_add_u32 v50, {L_QX}, v50")
    g("s_waitcnt vmcnt(6)")
    stamp(g, 1)
    for p in range(1, 8):
        g(f"v_add_f32 v96, v96, v{96+2*p}")
        g(f"v_add_f32 v97, v97, v{97+2*p}")
    g("v_cvt_pk_bf16_f32 v88, v96, v97")
    g("ds_write_b32 v49, v88")
    g("s_waitcnt lgkmcnt(0)")
    signal(g, 0)
    lwait(g, 0, 4)
    for ks in range(4):
        g(f"ds_read_b128 v[{96+4*ks}:{99+4*ks}], v50 offset:{64*ks}")
    g("s_waitcnt vmcnt(0) lgkmcnt(0)")
    g("v_mfma_f32_16x16x32_bf16 v[80:83], v[64:67], v[96:99], 0")
    for ks in range(1, 4):
        g(f"v_mfma_f32_16x16x32_bf16 v[80:83], v[{64+4*ks}:{67+4*ks}], v[{96+4*ks}:{99+4*ks}], v[80:83]")
    g("v_lshlrev_b32 v51, 15, v41")
    g("v_lshl_add_u32 v51, v2, 3, v51")
    g("s_lshl_b32 s4, s68, 10")
    g("s_lshl_b32 s5, s69, 7")
    g("s_add_u32 s4, s4, s5")
    g("s_lshl_b32 s5, s3, 5")
    g("s_add_u32 s4, s4, s5")
    g(f"s_add_u32 s4, s4, {QABS_OFF}")
    g("s_nop 7")
    g("v_cvt_pk_bf16_f32 v88, v80, v81")
    g("v_cvt_pk_bf16_f32 v89, v82, v83")
    g("v_cmp_gt_u32 vcc, 4, v3")
    g("s_and_saveexec_b64 s[10:11], vcc")
    g("buffer_store_dwordx2 v[88:89], v51, s[64:67], s4 offen sc1")
    g("s_mov_b64 exec, s[10:11]")
    stamp(g, 2)
    g("s_cmp_ge_u32 s2, 224")
    g("s_cbranch_scc1 LC_nf1")
    g("v_and_b32 v7, 7, v1")
    g("v_lshlrev_b32 v7, 2, v7")
    g("v_lshrrev_b32 v30, 3, v1")
    g("s_mov_b32 s4, 7168")
    g("v_mul_lo_u32 v30, v30, s4")
    g("v_add_u32 v7, v7, v30")
    g("s_mul_i32 s4, s3, 229376")
    g("s_lshl_b32 s5, s2, 5")
    g("s_add_u32 s4, s4, s5")
    g(f"s_add_u32 s4, s4, {FFN_OFF}")
    for i in range(4):
        g(f"buffer_load_dword v{232+i}, v7, s[64:67], s4 offen")
        g("s_add_u32 s4, s4, 57344")
    g("LC_nf1:")
    srd(g, 48, 30, 1024)
    g("s_lshr_b32 s4, s2, 6")
    g("s_lshl_b32 s4, s4, 10")
    g("buffer_load_dwordx4 v[236:239], v4, s[64:67], s4 offen")
    g("buffer_load_dwordx4 v[240:243], v4, s[48:51], 0 offen")
    g("v_and_b32 v246, 7, v1")
    g("v_lshlrev_b32 v246, 1, v246")
    g("s_and_b32 s5, s2, 63")
    g("s_lshl_b32 s5, s5, 4")
    g("s_add_u32 s78, s5, s4")
    g("buffer_load_ushort v244, v246, s[52:55], s78 offen")
    g("buffer_load_ushort v245, v246, s[64:67], s78 offen")
    g("s_waitcnt vmcnt(4)")
    g("s_cmp_ge_u32 s2, 224")
    g("s_cbranch_scc1 LC_nf2")
    g("v_add_f32 v232, v232, v233")
    g("v_add_f32 v234, v234, v235")
    g("v_add_f32 v232, v232, v234")
    g("v_lshlrev_b32 v22, 2, v0")
    g(f"v_add_u32 v22, {L_HB}, v22")
    g("ds_write_b32 v22, v232")
    g("LC_nf2:")
    g("s_waitcnt lgkmcnt(0)")
    signal(g, 7)
    lwait(g, 7, 4)
    g("v_lshlrev_b32 v36, 11, v41")
    g("v_lshl_add_u32 v36, v2, 4, v36")
    g("s_cmp_ge_u32 s2, 224")
    g("s_cbranch_scc1 LC_nf3")
    g("s_lshl_b32 s7, s2, 13")
    g("s_lshl_b32 s5, s3, 9")
    g("s_add_u32 s7, s7, s5")
    g(f"s_add_u32 s7, s7, {YPART_OFF}")
    g("v_and_b32 v22, 31, v1")
    g("v_lshlrev_b32 v22, 2, v22")
    g(f"v_add_u32 v22, {L_HB}, v22")
    for w in range(4):
        g(f"ds_read_b32 v{24+w}, v22 offset:{w*256}")
        g(f"ds_read_b32 v{28+w}, v22 offset:{w*256+128}")
    g("v_lshlrev_b32 v23, 10, v42")
    g("v_lshl_add_u32 v23, v41, 3, v23")
    g("s_lshl_b32 s4, s3, 8")
    g(f"s_add_u32 s4, s4, {L_WD}")
    g("v_add_u32 v23, s4, v23")
    for mt in range(8):
        g(f"ds_read_b64_tr_b16 v[{128+4*mt}:{129+4*mt}], v23 offset:{mt*32}")
    g("s_waitcnt lgkmcnt(8)")
    g("v_add_f32 v24, v24, v25\nv_add_f32 v26, v26, v27\nv_add_f32 v24, v24, v26")
    g("v_add_f32 v28, v28, v29\nv_add_f32 v30, v30, v31\nv_add_f32 v28, v28, v30")
    rb(g, 24, 25)
    rb(g, 28, 25)
    silu_inplace(g, 24, 25)
    rb(g, 24, 25)
    g("v_mul_f32 v24, v24, v28")
    g("v_cvt_pk_bf16_f32 v24, v24, v24")
    g("v_and_b32 v22, 31, v1")
    g("v_lshlrev_b32 v22, 1, v22")
    g("s_lshl_b32 s4, s3, 6")
    g(f"s_add_u32 s4, s4, {L_HF}")
    g("v_add_u32 v22, s4, v22")
    g("ds_write_b16 v22, v24")
    g("v_lshlrev_b32 v22, 4, v41")
    g("v_and_b32 v23, 1, v2")
    g("v_lshl_add_u32 v22, v23, 3, v22")
    g("v_add_u32 v22, s4, v22")
    g("s_waitcnt lgkmcnt(0)")
    g("ds_read_b64 v[32:33], v22")
    g("v_mov_b32 v34, 0\nv_mov_b32 v35, 0")
    for mt in range(8):
        g(f"v_mov_b32 v{130+4*mt}, v{128+4*mt}")
        g(f"v_mov_b32 v{131+4*mt}, v{129+4*mt}")
    g("v_cmp_gt_u32 vcc, 2, v2")
    g("s_waitcnt lgkmcnt(0)")
    g("v_cndmask_b32 v32, 0, v32, vcc")
    g("v_cndmask_b32 v33, 0, v33, vcc")
    g("s_nop 1")
    for mt in range(8):
        g(f"v_mfma_f32_16x16x32_bf16 v[{160+4*mt}:{163+4*mt}], v[{128+4*mt}:{131+4*mt}], v[32:35], 0")
    g("s_nop 7")
    g("v_cmp_gt_u32 vcc, 4, v3")
    g("s_and_saveexec_b64 s[10:11], vcc")
    for mt in range(8):
        g(f"buffer_store_dwordx4 v[{160+4*mt}:{163+4*mt}], v36, s[64:67], s7 offen offset:{mt*64} sc1")
    g("s_mov_b64 exec, s[10:11]")
    g("LC_nf3:")
    signal(g, 17)
    stamp(g, 19)
    g("s_lshl_b32 s6, s3, 2")
    for i in range(4):
        g(f"s_add_u32 s7, s6, {i}")
        g(f"v_xor_b32 v{24+i}, s7, v1")
        g(f"v_lshlrev_b32 v{24+i}, 4, v{24+i}")
        g("s_lshl_b32 s7, s7, 10")
        g(f"s_add_u32 s7, s7, {L_QA}")
        g(f"v_add_u32 v{24+i}, s7, v{24+i}")
    g("s_lshl_b32 s5, s75, 5")
    g("s_lshl_b32 s6, s74, 4")
    g("s_add_u32 s5, s5, s6")
    g("s_lshl_b32 s6, s3, 2")
    g("s_add_u32 s5, s5, s6")
    g("s_lshl_b32 s5, s5, 10")
    g(f"s_add_u32 s5, s5, {QABS_OFF}")
    g("s_mov_b32 s82, 0")
    if os.environ.get("LATEPOLL"):
        lwait(g, 1, 4, 2)
    else:
        pass
    g("LC_pollA:")
    g("s_sleep 8" if not os.environ.get("LATEPOLL") else "s_sleep 1")
    for i in range(4):
        g(f"buffer_load_dwordx4 v[{8+4*i}:{11+4*i}], v4, s[64:67], s5 offen offset:{1024*i} sc1")
    g("s_waitcnt vmcnt(0)")
    g("v_max3_u32 v28, v8, v9, v10")
    for i in range(6):
        g(f"v_max3_u32 v28, v28, v{11+2*i}, v{12+2*i}")
    g("v_max_u32 v28, v28, v23")
    g("v_cmp_eq_u32 vcc, -1, v28")
    g("s_add_u32 s82, s82, 1")
    g(f"s_cmp_gt_u32 s82, {SPIN_MAX}")
    g("s_cbranch_scc1 LC_pollAd")
    g("s_cbranch_vccnz LC_pollA")
    g("LC_pollAd:")
    stamp(g, 3)
    g("s_waitcnt vmcnt(0)")
    g("v_lshlrev_b32 v29, 12, v1")
    g("v_mov_b32 v30, 1")
    g("s_lshl_b32 s4, s2, 2")
    g("s_lshl_b32 s5, s3, 10")
    g("s_add_u32 s4, s4, s5")
    g(f"s_add_u32 s4, s4, {FLY_OFF}")
    g("s_mov_b64 exec, 0xffffffff")
    g("buffer_store_dword v30, v29, s[64:67], s4 offen sc1")
    g("s_mov_b64 exec, -1")
    lwait(g, 17, 4)
    for i in range(4):
        g(f"ds_write_b128 v{24+i}, v[{8+4*i}:{11+4*i}]")
    for i in range(4):
        g(f"v_add_u32 v6, {4*i}, v2")
        g("v_xor_b32 v6, v6, v3")
        g("v_lshlrev_b32 v6, 4, v6")
        g(f"v_lshl_add_u32 v{8+i}, v3, 10, v6")
        g(f"v_add_u32 v{8+i}, {L_QA}, v{8+i}")
    g("s_lshl_b32 s4, s3, 5")
    g("v_add_u32 v12, s4, v3")
    g(f"s_mov_b32 s4, {RS}")
    g("v_mul_lo_u32 v12, v12, s4")
    g("v_lshl_add_u32 v12, v2, 4, v12")
    for i in range(8):
        g(f"v_mov_b32 v{48+i}, 0")
    g("s_waitcnt lgkmcnt(0)")
    signal(g, 2)
    lwait(g, 2, 4)
    for s_ in range(16):
        g(f"ds_read_b128 v[{64+4*s_}:{67+4*s_}], v{8+(s_&3)} offset:{(s_>>2)*256}")
    lwait(g, 1, 4, 1)
    stamp(g, 4)
    def sissue(grp):
        e = grp & 1
        for kk in range(4):
            s_ = grp * 4 + kk
            for T in range(2):
                rr = 128 + e * 32 + (kk * 2 + T) * 4
                g(f"ds_read_b128 v[{rr}:{rr+3}], v12 offset:{T*16*RS + s_*64}")
    def scompute(grp):
        e = grp & 1
        for kk in range(4):
            s_ = grp * 4 + kk
            for T in range(2):
                rr = 128 + e * 32 + (kk * 2 + T) * 4
                g(f"v_mfma_f32_16x16x32_bf16 v[{48+4*T}:{51+4*T}], v[{rr}:{rr+3}], v[{64+4*s_}:{67+4*s_}], v[{48+4*T}:{51+4*T}]")
    sissue(0)
    for grp in range(4):
        if grp < 3:
            sissue(grp + 1)
            g("s_waitcnt lgkmcnt(8)")
        else:
            g("s_waitcnt lgkmcnt(0)")
        scompute(grp)
    g("v_lshlrev_b32 v13, 6, v3")
    g("v_lshl_add_u32 v14, v2, 2, v13")
    g("s_lshl_b32 s4, s3, 4")
    g("v_add_u32 v14, s4, v14")
    g(f"v_add_u32 v15, {L_MX}, v14")
    g(f"v_add_u32 v16, {L_MX}, v13")
    g("s_nop 3")
    for i in range(8):
        rb(g, 48 + i, 56)
        g(f"v_mul_f32 v{48+i}, 0x3db504f3, v{48+i}")
        rb(g, 48 + i, 56)
    g("v_max3_f32 v56, v48, v49, v50")
    g("v_max3_f32 v56, v56, v51, v52")
    g("v_max3_f32 v56, v56, v53, v54")
    g("v_max_f32 v56, v56, v55")
    g("ds_write_b32 v15, v56")
    g("s_waitcnt lgkmcnt(0)")
    signal(g, 3)
    lwait(g, 3, 4)
    for i in range(4):
        g(f"ds_read_b128 v[{128+4*i}:{131+4*i}], v16 offset:{16*i}")
    g("s_waitcnt lgkmcnt(0)")
    g("v_max3_f32 v57, v128, v129, v130")
    for i in range(6):
        g(f"v_max3_f32 v57, v57, v{131+2*i}, v{132+2*i}")
    g("v_max_f32 v57, v57, v143")
    for i in range(8):
        g(f"v_sub_f32 v{48+i}, v{48+i}, v57")
        g(f"v_mul_f32 v{48+i}, 0x3fb8aa3b, v{48+i}")
        g(f"v_exp_f32 v{48+i}, v{48+i}")
    g("s_nop 0")
    g("v_add_f32 v58, v48, v49")
    for i in range(2, 8):
        g(f"v_add_f32 v58, v58, v{48+i}")
    for i in range(4):
        g(f"v_cvt_pk_bf16_f32 v{60+i}, v{48+2*i}, v{49+2*i}")
    g(f"v_add_u32 v15, {L_LS}, v14")
    g("ds_write_b32 v15, v58")
    g("s_lshl_b32 s4, s3, 10")
    g(f"s_add_u32 s4, s4, {L_P}")
    g("v_add_u32 v17, s4, v4")
    g("ds_write_b128 v17, v[60:63]")
    g(f"v_add_u32 v17, {L_P}, v4")
    g("v_lshl_add_u32 v18, v2, 2, v40")
    g(f"s_mov_b32 s4, {RS}")
    g("v_mul_lo_u32 v18, v18, s4")
    g("s_lshl_b32 s4, s3, 8")
    g("v_add_u32 v18, s4, v18")
    g("v_lshl_add_u32 v20, v41, 4, v18")
    g(f"v_add_u32 v21, {64*RS}, v20")
    g("v_lshl_add_u32 v18, v41, 3, v18")
    g(f"v_add_u32 v19, {64*RS}, v18")
    g("s_waitcnt lgkmcnt(0)")
    signal(g, 4)
    lwait(g, 4, 4)
    stamp(g, 5)
    for u in range(4):
        g(f"ds_read_b128 v[{64+4*u}:{67+4*u}], v17 offset:{u*1024}")
    g(f"v_add_u32 v16, {L_LS}, v13")
    for i in range(4):
        g(f"ds_read_b128 v[{80+4*i}:{83+4*i}], v16 offset:{16*i}")
    def tr_pipeline(bfrag, accbase, tmpbase, areg, coloff):
        def pissue(ct):
            e = ct & 1
            for u in range(4):
                for half in range(2):
                    rr = tmpbase + e * 16 + u * 4 + half * 2
                    off = (32 * (u & 1) + 16 * half) * RS + coloff(ct)
                    g(f"ds_read_b64_tr_b16 v[{rr}:{rr+1}], v{areg + (u>>1)} offset:{off}")
        def pcompute(ct):
            e = ct & 1
            for u in range(4):
                rr = tmpbase + e * 16 + u * 4
                c = "0" if u == 0 else f"v[{accbase+4*ct}:{accbase+3+4*ct}]"
                g(f"v_mfma_f32_16x16x32_bf16 v[{accbase+4*ct}:{accbase+3+4*ct}], v[{rr}:{rr+3}], v[{bfrag+4*u}:{bfrag+3+4*u}], {c}")
        pissue(0)
        for ct in range(8):
            if ct < 7:
                pissue(ct + 1)
                g("s_waitcnt lgkmcnt(8)")
            else:
                g("s_waitcnt lgkmcnt(0)")
            pcompute(ct)
    tr_pipeline(64, 192, 128, 20, lambda ct: (ct >> 1) * 64 + (ct & 1) * 8)
    signal(g, 11)
    g("v_add_f32 v59, v80, v81")
    for i in range(2, 16):
        g(f"v_add_f32 v59, v59, v{80+i}")
    g("v_mov_b32 v58, v57")
    g("v_lshlrev_b32 v22, 17, v3")
    g("v_lshl_add_u32 v22, v2, 4, v22")
    g("s_lshl_b32 s4, s74, 21")
    g("s_lshl_b32 s5, s3, 15")
    g("s_add_u32 s4, s4, s5")
    g("s_lshl_b32 s5, s75, 12")
    g("s_add_u32 s4, s4, s5")
    g("s_lshl_b32 s5, s76, 7")
    g("s_add_u32 s4, s4, s5")
    g(f"s_add_u32 s4, s4, {OPART_OFF}")
    g("s_add_u32 s5, s4, 16384")
    for p in range(4):
        for q in range(4):
            g(f"v_cvt_pk_bf16_f32 v{128+4*p+q}, v{192+8*p+2*q}, v{193+8*p+2*q}")
        g(f"buffer_store_dwordx4 v[{128+4*p}:{131+4*p}], v22, s[64:67], s{4+(p>>1)} offen offset:{(p&1)*64} sc1")
    stamp(g, 17)
    g("v_lshlrev_b32 v21, 12, v3")
    g("s_lshl_b32 s4, s74, 16")
    g("s_lshl_b32 s5, s3, 10")
    g("s_add_u32 s4, s4, s5")
    g("s_lshl_b32 s5, s75, 8")
    g("s_add_u32 s4, s4, s5")
    g("s_lshl_b32 s5, s76, 3")
    g("s_add_u32 s4, s4, s5")
    g(f"s_add_u32 s4, s4, {ML_OFF}")
    g("s_waitcnt vmcnt(0)")
    g("s_mov_b64 exec, 0xffff")
    g("buffer_store_dwordx2 v[58:59], v21, s[64:67], s4 offen sc1")
    g("s_mov_b64 exec, -1")
    stamp(g, 6)
    g("s_lshr_b32 s80, s2, 6")
    g("s_and_b32 s81, s2, 63")
    g("v_and_b32 v230, 7, v1")
    g("v_lshlrev_b32 v230, 2, v230")
    g("v_lshrrev_b32 v5, 3, v1")
    g("v_lshl_add_u32 v230, v5, 13, v230")
    g("s_lshl_b32 s4, s3, 19")
    g("s_lshl_b32 s5, s80, 11")
    g("s_add_u32 s4, s4, s5")
    g("s_lshl_b32 s5, s81, 5")
    g("s_add_u32 s83, s4, s5")
    g("s_and_b32 s4, s2, 31")
    g("s_lshl_b32 s4, s4, 12")
    g("s_lshr_b32 s5, s81, 4")
    g("s_lshl_b32 s5, s5, 10")
    g("s_add_u32 s4, s4, s5")
    g("s_lshl_b32 s5, s3, 8")
    g("s_add_u32 s15, s4, s5")
    g(f"s_add_u32 s4, s15, {FLY_OFF}")
    g("v_lshlrev_b32 v231, 2, v1")
    g("s_mov_b32 s82, 0")
    g("LC_pollY:")
    g("buffer_load_dword v6, v231, s[64:67], s4 offen sc1")
    g("s_waitcnt vmcnt(0)")
    g("v_cmp_ne_u32 vcc, 1, v6")
    g("s_add_u32 s82, s82, 1")
    g(f"s_cmp_gt_u32 s82, {SPIN_MAX}")
    g("s_cbranch_scc1 LC_pollYd")
    g("s_cbranch_vccnz LC_pollY")
    g("LC_pollYd:")
    g(f"s_add_u32 s6, s83, {YPART_OFF}")
    for i in range(4, 8):
        g(f"v_mov_b32 v{24+i}, 0")
    for i in range(8):
        if i == 4:
            g("s_cmp_eq_u32 s3, 3")
            g("s_cbranch_scc1 LC_y8")
        g(f"buffer_load_dword v{24+i}, v230, s[64:67], s6 offen sc1")
        g("s_add_u32 s6, s6, 65536")
    g("LC_y8:")
    g("s_waitcnt vmcnt(0)")
    for i in range(1, 8):
        g(f"v_add_f32 v24, v24, v{24+i}")
    g("v_mov_b32 v229, v24")
    lwait(g, 6, 4, 1)
    stamp(g, 18)
    g("v_lshlrev_b32 v36, 11, v41")
    g("v_lshl_add_u32 v36, v2, 4, v36")
    stamp(g, 19)
    g("v_and_b32 v5, 31, v1")
    g("v_lshlrev_b32 v5, 3, v5")
    g("s_lshl_b32 s80, s68, 12")
    g("s_lshr_b32 s5, s69, 1")
    g("s_lshl_b32 s5, s5, 10")
    g("s_add_u32 s80, s80, s5")
    g("s_lshl_b32 s5, s3, 8")
    g("s_add_u32 s80, s80, s5")
    g(f"s_add_u32 s80, s80, {ML_OFF}")
    g("v_lshlrev_b32 v6, 1, v1")
    g("s_lshl_b32 s81, s68, 17")
    g("s_lshl_b32 s5, s69, 14")
    g("s_add_u32 s81, s81, s5")
    g("s_lshl_b32 s5, s3, 12")
    g("s_add_u32 s81, s81, s5")
    g(f"s_add_u32 s81, s81, {OPART_OFF}")
    g("s_mov_b32 s82, 0")
    g("LC_pollml:")
    if not os.environ.get("NOSLEEP"):
        g("s_sleep 2")
    g("buffer_load_dwordx2 v[8:9], v5, s[64:67], s80 offen sc1")
    g("s_waitcnt vmcnt(0)")
    g("v_add_f32 v10, v8, v9")
    g("v_cmp_u_f32 vcc, v10, v10")
    g("s_add_u32 s82, s82, 1")
    g(f"s_cmp_gt_u32 s82, {SPIN_MAX}")
    g("s_cbranch_scc1 LC_pollO")
    g("s_cbranch_vccnz LC_pollml")
    g("LC_pollO:")
    stamp(g, 14)
    for kc in range(32):
        g(f"buffer_load_ushort v{64+kc}, v6, s[64:67], s81 offen offset:{kc*128} sc1")
    g("v_mov_b32 v17, v8")
    dpp_reduce(g, "v_max_f32", 17, 72)
    g("v_subrev_f32 v17, s72, v8")
    g("v_mul_f32 v17, 0x3fb8aa3b, v17")
    g("v_exp_f32 v17, v17")
    g("s_nop 0")
    g("v_mul_f32 v10, v17, v9")
    dpp_reduce(g, "v_add_f32", 10, 73)
    g("v_mov_b32 v20, s73")
    g("v_mul_f32 v20, 0.5, v20")
    g("v_rcp_f32 v20, v20")
    g("v_and_b32 v21, 0x23, v1")
    g("v_bfe_u32 v22, v1, 2, 2")
    g("v_lshl_add_u32 v21, v22, 3, v21")
    g("v_bfe_u32 v22, v1, 4, 1")
    g("v_lshl_add_u32 v21, v22, 2, v21")
    g("v_lshlrev_b32 v21, 1, v21")
    g("s_lshl_b32 s12, s3, 7")
    g(f"s_add_u32 s12, s12, {L_OL}")
    g("v_add_u32 v21, s12, v21")
    g("v_mov_b32 v11, 0")
    for q in range(4):
        for i in range(8):
            g(f"v_readlane_b32 s{4+i}, v17, {8*q+i}")
        g(f"s_waitcnt vmcnt({24-8*q})")
        for i in range(8):
            kc = 8 * q + i
            g(f"v_lshlrev_b32 v{64+kc}, 16, v{64+kc}")
            g(f"v_fmac_f32 v11, s{4+i}, v{64+kc}")
    stamp(g, 15)
    g("v_mul_f32 v11, v11, v20")
    g("v_cvt_pk_bf16_f32 v11, v11, v11")
    g("ds_write_b16 v21, v11")
    g(f"v_add_u32 v24, {L_WUV}, v43")
    for dt in range(8):
        g(f"v_xor_b32 v25, {dt}, v42")
        g("v_lshl_add_u32 v25, v25, 5, v24")
        for s_ in range(2):
            for half in range(2):
                rr = 128 + dt * 8 + s_ * 4 + half * 2
                g(f"ds_read_b64_tr_b16 v[{rr}:{rr+1}], v25 offset:{s_*8192 + half*4096}")
        if dt % 2 == 1:
            g("s_waitcnt lgkmcnt(4)")
    g("s_waitcnt lgkmcnt(0)")
    signal(g, 8)
    g("v_lshlrev_b32 v22, 7, v41")
    g("v_lshl_add_u32 v22, v2, 4, v22")
    g(f"v_add_u32 v22, {L_OL}, v22")
    lwait(g, 8, 4)
    stamp(g, 7)
    g("ds_read_b128 v[44:47], v22")
    g("ds_read_b128 v[48:51], v22 offset:64")
    g("s_waitcnt lgkmcnt(0)")
    for dt in range(8):
        g(f"v_mfma_f32_16x16x32_bf16 v[{96+4*dt}:{99+4*dt}], v[{128+8*dt}:{131+8*dt}], v[44:47], 0")
        g(f"v_mfma_f32_16x16x32_bf16 v[{96+4*dt}:{99+4*dt}], v[{132+8*dt}:{135+8*dt}], v[48:51], v[{96+4*dt}:{99+4*dt}]")
    g("s_nop 7")
    for dt in range(8):
        g(f"v_cvt_pk_bf16_f32 v{44+2*dt}, v{96+4*dt}, v{97+4*dt}")
        g(f"v_cvt_pk_bf16_f32 v{45+2*dt}, v{98+4*dt}, v{99+4*dt}")
    tr_pipeline(44, 192, 64, 18, lambda ct: ct * 32)
    g("s_lshl_b32 s4, s2, 13")
    g("s_lshl_b32 s5, s3, 9")
    g("s_add_u32 s4, s4, s5")
    g(f"s_add_u32 s6, s4, {SPART_OFF}")
    g("s_nop 7")
    g("v_cmp_gt_u32 vcc, 4, v3")
    g("s_and_saveexec_b64 s[10:11], vcc")
    for mt in range(8):
        g(f"buffer_store_dwordx4 v[{192+4*mt}:{195+4*mt}], v36, s[64:67], s6 offen offset:{mt*64} sc1")
    g("s_mov_b64 exec, s[10:11]")
    stamp(g, 8)
    g("v_mov_b32 v8, 0")
    for i in range(4):
        g(f"v_lshlrev_b32 v9, 16, v{236+i}")
        g(f"v_lshlrev_b32 v10, 16, v{240+i}")
        g("v_fmac_f32 v8, v9, v10")
        g(f"v_and_b32 v9, 0xffff0000, v{236+i}")
        g(f"v_and_b32 v10, 0xffff0000, v{240+i}")
        g("v_fmac_f32 v8, v9, v10")
    dpp_reduce(g, "v_add_f32", 8, 72)
    g("v_mov_b32 v13, s72")
    rb(g, 13, 12)
    g("v_mul_f32 v13, 0xbfb8aa3b, v13")
    g("v_exp_f32 v13, v13")
    g("s_nop 0")
    g("v_add_f32 v13, 1.0, v13")
    g("v_rcp_f32 v13, v13")
    g("s_nop 0")
    rb(g, 13, 12)
    g("v_lshlrev_b32 v245, 16, v245")
    g("v_lshlrev_b32 v244, 16, v244")
    g("s_waitcnt vmcnt(0)")
    g("v_lshlrev_b32 v5, 12, v1")
    g("v_mov_b32 v6, 1")
    g("s_lshl_b32 s4, s2, 2")
    g("s_lshl_b32 s5, s3, 10")
    g("s_add_u32 s4, s4, s5")
    g(f"s_add_u32 s4, s4, {FLC_OFF}")
    g("s_mov_b64 exec, 0xffffffff")
    g("buffer_store_dword v6, v5, s[64:67], s4 offen sc1")
    g("s_mov_b64 exec, -1")
    g(f"s_add_u32 s4, s15, {FLC_OFF}")
    g("s_mov_b32 s82, 0")
    g("LC_pollC:")
    if not os.environ.get("NOSLEEP"):
        g("s_sleep 1")
    g("buffer_load_dword v6, v231, s[64:67], s4 offen sc1")
    g("s_waitcnt vmcnt(0)")
    g("v_cmp_ne_u32 vcc, 1, v6")
    g("s_add_u32 s82, s82, 1")
    g(f"s_cmp_gt_u32 s82, {SPIN_MAX}")
    g("s_cbranch_scc1 LC_pollC2")
    g("s_cbranch_vccnz LC_pollC")
    g("LC_pollC2:")
    stamp(g, 20)
    g(f"s_add_u32 s5, s83, {SPART_OFF}")
    for i in range(8):
        g(f"buffer_load_dword v{16+i}, v230, s[64:67], s5 offen sc1")
        g("s_add_u32 s5, s5, 65536")
    g("v_mov_b32 v24, v229")
    g("s_waitcnt vmcnt(0)")
    for i in range(1, 8):
        g(f"v_add_f32 v16, v16, v{16+i}")
    stamp(g, 16)
    for msk in (8, 16):
        g(f"ds_swizzle_b32 v17, v16 offset:{(msk<<10)|0x1f}")
        g(f"ds_swizzle_b32 v25, v24 offset:{(msk<<10)|0x1f}")
        g("s_waitcnt lgkmcnt(0)")
        g("v_add_f32 v16, v16, v17")
        g("v_add_f32 v24, v24, v25")
    g("v_mov_b32 v17, v16")
    g("v_mov_b32 v25, v24")
    g("s_nop 1")
    g("v_permlane32_swap_b32 v16, v17")
    g("v_permlane32_swap_b32 v24, v25")
    g("s_nop 1")
    g("v_add_f32 v16, v16, v17")
    g("v_add_f32 v24, v24, v25")
    g("v_and_b32 v11, 7, v1")
    g("v_lshlrev_b32 v11, 2, v11")
    g(f"v_add_u32 v11, {L_FIN}, v11")
    g("s_lshl_b32 s4, s3, 6")
    g("v_add_u32 v12, s4, v11")
    g("ds_write_b32 v12, v16")
    g("ds_write_b32 v12, v24 offset:32")
    g("s_waitcnt lgkmcnt(0)")
    signal(g, 10)
    g("s_cmp_lg_u32 s3, 0")
    g("s_cbranch_scc1 L_done")
    lwait(g, 10, 4)
    for w in range(4):
        g(f"ds_read_b32 v{64+w}, v11 offset:{w*64}")
        g(f"ds_read_b32 v{96+w}, v11 offset:{w*64+32}")
    srd(g, 48, 38, 4096)
    g("s_waitcnt lgkmcnt(0)")
    g("v_add_f32 v64, v64, v65\nv_add_f32 v66, v66, v67\nv_add_f32 v64, v64, v66")
    g("v_add_f32 v96, v96, v97\nv_add_f32 v98, v98, v99\nv_add_f32 v96, v96, v98")
    rb(g, 64, 12)
    rb(g, 96, 12)
    g("v_mul_f32 v96, v96, v13")
    rb(g, 96, 12)
    g("v_add_f32 v96, v245, v96")
    rb(g, 96, 12)
    silu_inplace(g, 96, 14)
    rb(g, 96, 12)
    g("v_mul_f32 v64, v64, v96")
    rb(g, 64, 12)
    g("v_add_f32 v64, v244, v64")
    g("v_cvt_pk_bf16_f32 v64, v64, v64")
    g("s_mov_b64 exec, 0xff")
    g("buffer_store_short v64, v246, s[48:51], s78 offen")
    stamp_flush(g, 0)

def kdesc(g, name, vgpr):
    g.raw(".p2align 6")
    g.raw(f".amdhsa_kernel {name}")
    g.raw(f"  .amdhsa_next_free_vgpr {vgpr}")
    g.raw("  .amdhsa_next_free_sgpr 102")
    g.raw(f"  .amdhsa_accum_offset {vgpr}")
    g.raw("  .amdhsa_group_segment_fixed_size 0")
    g.raw("  .amdhsa_kernarg_size 112")
    g.raw("  .amdhsa_user_sgpr_count 2")
    g.raw("  .amdhsa_user_sgpr_kernarg_segment_ptr 1")
    g.raw("  .amdhsa_system_sgpr_workgroup_id_x 1")
    g.raw("  .amdhsa_float_denorm_mode_32 3")
    g.raw(".end_amdhsa_kernel")

def main(out):
    g = G()
    g.L = [f"; @launch kernel=k0_kernel grid=(256,1,1) block=(256,1,1) lds={K0_LDS}",
           f"; @launch kernel=k1_kernel grid=(256,1,1) block=(512,1,1) lds={LDS_TOTAL}" if not os.environ.get("ONLYK0") else ";",
           '.amdgcn_target "amdgcn-amd-amdhsa--gfx950"', ".text"]
    gen_k0(g)
    gen_kernel(g)
    g.raw('.section .rodata,"a"')
    kdesc(g, "k0_kernel", 136)
    kdesc(g, "k1_kernel", 256)
    open(out, "w").write("\n".join(g.L) + "\n")

if __name__ == "__main__":
    if len(sys.argv) > 2 and sys.argv[2] == "debug":
        DEBUG = True
    main(sys.argv[1])
```

```python
import sys, os
NAME = "recurrent_scan__compressed_kv_cla__moe_arch_mod__decode"

XN_OFF   = 0x0
QP_OFF   = 0x140000
QABS_OFF = 0x10000
FFN_OFF  = 0x40000
OPART_OFF= 0x200000
SPART_OFF= 0x600000
YPART_OFF= 0x800000
ML_OFF   = 0xA00000
FLC_OFF  = 0xA20000
FLY_OFF  = 0xA40000
STAMP_OFF= 0xC00000
WS_SIZE  = 0x1000000
DEBUG = False
SPIN_MAX = 200000

RS = 1056
R0, S1, XR, S2 = 0, 135168, 151552, 155648
LDS_TOTAL = 163840
L_WQ, L_FF, L_XN, L_QX = R0, S1, XR, S2
L_CKV, L_QA, L_P, L_MX, L_LS = R0, S1, S2, S2 + 4096, S2 + 5120
L_WO, L_WUV, L_WD, L_OL, L_HB, L_HF, L_FIN = R0, S1, S1, XR, XR + 512, XR + 1536, XR + 2048

class G:
    def __init__(self):
        self.L = []
    def __call__(self, s):
        for line in s.strip("\n").split("\n"):
            self.L.append("    " + line.strip() if not line.strip().endswith(":") else line.strip())
    def raw(self, s):
        self.L.append(s)

def srd(g, d, base, size):
    g(f"s_mov_b32 s{d}, s{base}")
    g(f"s_and_b32 s{d+1}, s{base+1}, 0xffff")
    g(f"s_mov_b32 s{d+2}, 0x{size:x}")
    g(f"s_mov_b32 s{d+3}, 0x00020000")

def dpp_reduce(g, op, v, sdst):
    for sh in (1, 2, 4, 8):
        g("s_nop 1")
        g(f"{op}_dpp v{v}, v{v}, v{v} row_shr:{sh} row_mask:0xf bank_mask:0xf")
    g("s_nop 1")
    g(f"{op}_dpp v{v}, v{v}, v{v} row_bcast:15 row_mask:0xa bank_mask:0xf")
    g("s_nop 1")
    g(f"{op}_dpp v{v}, v{v}, v{v} row_bcast:31 row_mask:0xc bank_mask:0xf")
    g("s_nop 1")
    g(f"v_readlane_b32 s{sdst}, v{v}, 63")
    g("s_nop 3")

def rb(g, v, tmp):
    g(f"v_cvt_pk_bf16_f32 v{tmp}, v{v}, v{v}")
    g(f"v_lshlrev_b32 v{v}, 16, v{tmp}")

NSTAMP = 32
def stamp(g, i):
    if DEBUG:
        g("s_memrealtime s[84:85]")
        g("s_waitcnt lgkmcnt(0)")
        g(f"v_writelane_b32 v247, s84, {i}")
HST = bool(os.environ.get("HST"))
HWG = int(os.environ.get("HWG", "0"))
def stamp_flush(g, off):
    if DEBUG and HST:
        if off != 0:
            return
        g("s_waitcnt vmcnt(0) lgkmcnt(0)")
        stamp(g, 31)
        g(f"s_cmp_lg_u32 s2, {HWG}")
        g("s_cbranch_scc1 L_done")
        g("s_mov_b32 s60, s40")
        g("s_and_b32 s61, s41, 0xffff")
        g("s_mov_b32 s62, 256")
        g("s_mov_b32 s63, 0x00020000")
        g("s_mov_b64 exec, 1")
        g("v_mov_b32 v1, 0")
        for k, i in enumerate([0, 1, 2, 3, 4, 5, 17, 6, 14, 15, 7, 8, 20, 31]):
            g(f"v_readlane_b32 s4, v247, {i}")
            g("v_readlane_b32 s5, v247, 0")
            g("s_nop 3")
            g("s_sub_u32 s4, s4, s5")
            g("v_mov_b32 v2, s4")
            g(f"buffer_store_dword v2, v1, s[60:63], 0 offen offset:{8+4*k}")
        return
    if DEBUG:
        g("s_waitcnt vmcnt(0) lgkmcnt(0)")
        stamp(g, 31)
        g("s_memtime s[84:85]")
        g("s_waitcnt lgkmcnt(0)")
        g("s_sub_u32 s84, s84, s86")
        g("v_writelane_b32 v247, s84, 30")
        g("s_lshl_b32 s6, s2, 8")
        g(f"s_add_u32 s6, s6, {STAMP_OFF + off}")
        g("s_mov_b64 exec, 0xffffffff")
        g("v_and_b32 v1, 63, v0")
        g("v_lshlrev_b32 v1, 2, v1")
        g("buffer_store_dword v247, v1, s[64:67], s6 offen")

def layernorm_row(g, vx, vt, s0):
    f = [vt + i for i in range(8)]
    T = vt + 8
    for i in range(4):
        g(f"v_lshlrev_b32 v{f[2*i]}, 16, v{vx+i}")
        g(f"v_and_b32 v{f[2*i+1]}, 0xffff0000, v{vx+i}")
    g(f"v_add_f32 v{T}, v{f[0]}, v{f[1]}")
    for i in range(2, 8):
        g(f"v_add_f32 v{T}, v{T}, v{f[i]}")
    dpp_reduce(g, "v_add_f32", T, s0)
    g(f"v_mov_b32 v{T+1}, s{s0}")
    g(f"v_mul_f32 v{T+1}, 0x3b000000, v{T+1}")
    g(f"v_sub_f32 v{T+2}, v{f[0]}, v{T+1}")
    g(f"v_mul_f32 v{T}, v{T+2}, v{T+2}")
    for i in range(1, 8):
        g(f"v_sub_f32 v{T+2}, v{f[i]}, v{T+1}")
        g(f"v_fmac_f32 v{T}, v{T+2}, v{T+2}")
    dpp_reduce(g, "v_add_f32", T, s0)
    g(f"v_mov_b32 v{T+2}, s{s0}")
    g(f"v_mul_f32 v{T+2}, 0x3b000000, v{T+2}")
    rb(g, T + 1, T + 3)
    rb(g, T + 2, T + 3)
    g(f"v_add_f32 v{T+2}, 0x3727c5ac, v{T+2}")
    rb(g, T + 2, T + 3)
    g(f"v_sqrt_f32 v{T+2}, v{T+2}")
    g("s_nop 0")
    rb(g, T + 2, T + 3)
    g(f"v_rcp_f32 v{T+3}, v{T+2}")
    g("s_nop 0")
    for i in range(8):
        g(f"v_sub_f32 v{f[i]}, v{f[i]}, v{T+1}")
        rb(g, f[i], T + 4)
        g(f"v_mul_f32 v{T+4}, v{f[i]}, v{T+3}")
        g(f"v_fma_f32 v{T+5}, -v{T+4}, v{T+2}, v{f[i]}")
        g(f"v_fma_f32 v{f[i]}, v{T+5}, v{T+3}, v{T+4}")
        rb(g, f[i], T + 4)

def silu_inplace(g, v, t):
    g(f"v_mul_f32 v{t}, 0xbfb8aa3b, v{v}")
    g(f"v_exp_f32 v{t}, v{t}")
    g("s_nop 0")
    g(f"v_add_f32 v{t}, 1.0, v{t}")
    g(f"v_rcp_f32 v{t}, v{t}")
    g("s_nop 0")
    g(f"v_mul_f32 v{v}, v{v}, v{t}")


K0_WQ, K0_FF, K0_XN = 0, 16384, 32768
K0_LDS = 36864
def gen_k0(g):
    name = "k0_kernel"
    g.raw(f".globl {name}")
    g.raw(".p2align 8")
    g.raw(f".type {name},@function")
    g.raw(f"{name}:")
    g("s_cmp_ge_u32 s2, 256")
    g("s_cbranch_scc1 K0_done")
    if HST:
        g("s_memrealtime s[90:91]")
    g("s_load_dwordx16 s[16:31], s[0:1], 0")
    g("s_load_dwordx8 s[32:39], s[0:1], 64")
    g("s_load_dwordx4 s[40:43], s[0:1], 96")
    g("v_lshrrev_b32 v1, 6, v0")
    g("v_and_b32 v0, 0xff, v0")
    g("v_readfirstlane_b32 s3, v1")
    g("v_and_b32 v1, 63, v0")
    g("v_lshrrev_b32 v2, 4, v1")
    g("v_and_b32 v3, 15, v1")
    g("v_lshrrev_b32 v40, 2, v3")
    g("v_and_b32 v41, 3, v3")
    g("v_lshlrev_b32 v4, 4, v1")
    g("s_and_b32 s68, s2, 7")
    g("s_lshl_b32 s68, s68, 2")
    g("s_lshr_b32 s4, s2, 3")
    g("s_and_b32 s4, s4, 3")
    g("s_add_u32 s68, s68, s4")
    g("s_lshr_b32 s69, s2, 5")
    g("s_mov_b32 s4, 0x12492493")
    g("s_mul_hi_u32 s71, s2, s4")
    g("s_mul_i32 s4, s71, 14")
    g("s_sub_u32 s70, s2, s4")
    g("s_waitcnt lgkmcnt(0)")
    srd(g, 64, 42, WS_SIZE)
    srd(g, 44, 20, 512 * 8192)
    srd(g, 48, 32, 512 * 3584)
    srd(g, 52, 34, 512 * 3584)
    srd(g, 56, 16, 4096)
    g("s_lshl_b32 s4, s3, 10")
    g("buffer_load_dwordx4 v[8:11], v4, s[56:59], s4 offen")
    g("s_and_b32 s5, s3, 1")
    g("s_lshl_b32 s5, s5, 3")
    g("v_lshlrev_b32 v5, 1, v2")
    g("v_add_u32 v5, s5, v5")
    g("v_xor_b32 v5, v5, v3")
    g("v_lshlrev_b32 v5, 4, v5")
    g("v_lshl_add_u32 v6, v2, 13, v5")
    g("s_lshl_b32 s6, s68, 8")
    g("s_lshl_b32 s7, s69, 19")
    g("s_add_u32 s6, s6, s7")
    g("s_lshl_b32 s7, s3, 15")
    g("s_add_u32 s6, s6, s7")
    g("s_lshl_b32 s8, s3, 10")
    for n in range(4):
        g("s_mov_b32 m0, s8")
        g("s_add_u32 s8, s8, 4096")
        g("buffer_load_dwordx4 v6, s[44:47], s6 offen nt lds")
        g("s_add_u32 s6, s6, 131072")
    g("s_cmp_ge_u32 s2, 224")
    g("s_cbranch_scc1 K0_noffn")
    g("s_mov_b32 s8, 3584")
    g("v_mul_lo_u32 v12, v2, s8")
    g("v_add_u32 v12, v12, v5")
    g("s_lshl_b32 s7, s70, 8")
    g("s_lshl_b32 s9, s71, 5")
    g("s_lshl_b32 s10, s3, 2")
    g("s_add_u32 s9, s9, s10")
    g("s_mul_i32 s9, s9, 3584")
    g("s_add_u32 s7, s7, s9")
    g("s_lshl_b32 s8, s3, 10")
    g(f"s_add_u32 s8, s8, {K0_FF}")
    for mat in range(2):
        for ii in range(2):
            g(f"s_add_u32 s10, s8, {mat*8192 + ii*4096}")
            g("s_mov_b32 m0, s10")
            g(f"s_add_u32 s9, s7, {ii*16*3584}")
            g(f"buffer_load_dwordx4 v12, s[{48+4*mat}:{51+4*mat}], s9 offen nt lds")
    g("K0_noffn:")
    if os.environ.get("PFCKV"):
        srd(g, 60, 18, 16 << 20)
        g("s_lshr_b32 s74, s2, 3")
        g("s_and_b32 s74, s74, 1")
        g("s_and_b32 s4, s2, 7")
        g("s_lshr_b32 s5, s2, 4")
        g("s_lshl_b32 s5, s5, 3")
        g("s_or_b32 s4, s4, s5")
        g("s_lshl_b32 s7, s4, 17")
        g("s_lshl_b32 s8, s74, 16")
        g("s_add_u32 s7, s7, s8")
        g("s_lshl_b32 s8, s3, 14")
        g("s_add_u32 s7, s7, s8")
        for n in range(16):
            g(f"buffer_load_dwordx4 v[{64+4*(n&3)}:{67+4*(n&3)}], v4, s[60:63], s7 offen" + os.environ["PFCKV"].replace("_", " "))
            g("s_add_u32 s7, s7, 1024")
    g("s_waitcnt vmcnt(4)")
    layernorm_row(g, 8, 20, 72)
    for i in range(4):
        g(f"v_cvt_pk_bf16_f32 v{36+i}, v{20+2*i}, v{21+2*i}")
    g("v_lshrrev_b32 v14, 2, v1")
    g("v_lshlrev_b32 v14, 6, v14")
    g("v_and_b32 v15, 1, v1")
    g("v_lshl_add_u32 v14, v15, 5, v14")
    g("v_bfe_u32 v15, v1, 1, 1")
    g("v_lshl_add_u32 v14, v15, 3, v14")
    g("s_lshl_b32 s4, s3, 10")
    g(f"s_add_u32 s4, s4, {K0_XN}")
    g("v_add_u32 v14, s4, v14")
    g("ds_write_b64 v14, v[36:37]")
    g("ds_write_b64 v14, v[38:39] offset:16")
    g("s_cmp_lg_u32 s2, 0")
    g("s_cbranch_scc1 K0_noxn")
    g("s_lshl_b32 s4, s3, 10")
    g("buffer_store_dwordx4 v[36:39], v4, s[64:67], s4 offen")
    g("K0_noxn:")
    g("v_and_b32 v42, 1, v2")
    g("v_lshl_add_u32 v42, v42, 2, v40")
    g("v_lshl_add_u32 v43, v2, 2, v40")
    g("v_lshlrev_b32 v43, 8, v43")
    g("v_lshl_add_u32 v43, v41, 3, v43")
    g("s_lshl_b32 s4, s3, 1")
    g("v_xor_b32 v44, s4, v42")
    g("v_lshl_add_u32 v44, v44, 5, v43")
    g("s_add_u32 s4, s4, 1")
    g("v_xor_b32 v45, s4, v42")
    g("v_lshl_add_u32 v45, v45, 5, v43")
    g("v_lshlrev_b32 v48, 10, v41")
    g("v_lshl_add_u32 v48, v2, 4, v48")
    g(f"v_add_u32 v48, {K0_XN}, v48")
    g("s_waitcnt vmcnt(0) lgkmcnt(0)")
    g("s_barrier")
    g("v_mov_b32 v16, -1\nv_mov_b32 v17, -1\nv_mov_b32 v18, -1\nv_mov_b32 v19, -1")
    g("v_lshlrev_b32 v13, 4, v0")
    g("s_lshl_b32 s7, s2, 15")
    g(f"s_add_u32 s7, s7, {OPART_OFF}")
    g("s_cmp_lg_u32 s3, 0")
    g("s_cbranch_scc1 K0_noml")
    g("v_mov_b32 v20, 0\nv_mov_b32 v21, 0\nv_mov_b32 v22, 0\nv_mov_b32 v23, 0")
    g("s_mov_b64 exec, 0xffffffff")
    g("s_lshl_b32 s7, s2, 9")
    g(f"s_add_u32 s8, s7, {ML_OFF}")
    g("buffer_store_dwordx4 v[16:19], v13, s[64:67], s8 offen")
    g(f"s_add_u32 s8, s7, {QABS_OFF}")
    g("buffer_store_dwordx4 v[16:19], v13, s[64:67], s8 offen")
    g(f"s_add_u32 s8, s7, {FLC_OFF}")
    g("buffer_store_dwordx4 v[20:23], v13, s[64:67], s8 offen")
    g(f"s_add_u32 s8, s7, {FLY_OFF}")
    g("buffer_store_dwordx4 v[20:23], v13, s[64:67], s8 offen")
    g("s_mov_b64 exec, -1")
    g("K0_noml:")
    g("s_lshl_b32 s4, s69, 7")
    g("v_add_u32 v52, s4, v48")
    g("ds_read_b128 v[96:99], v52")
    g("ds_read_b128 v[100:103], v52 offset:64")
    for d in range(2):
        for s_ in range(2):
            for half in range(2):
                rr = 104 + (d * 2 + s_) * 4 + half * 2
                g(f"ds_read_b64_tr_b16 v[{rr}:{rr+1}], v{44+d} offset:{K0_WQ + s_*8192 + half*4096}")
    g("s_waitcnt lgkmcnt(0)")
    for d in range(2):
        g(f"v_mfma_f32_16x16x32_bf16 v[{80+4*d}:{83+4*d}], v[{104+8*d}:{107+8*d}], v[96:99], 0")
        g(f"v_mfma_f32_16x16x32_bf16 v[{80+4*d}:{83+4*d}], v[{108+8*d}:{111+8*d}], v[100:103], v[{80+4*d}:{83+4*d}]")
    g("v_lshlrev_b32 v51, 9, v41")
    g("v_lshl_add_u32 v51, v2, 4, v51")
    g("s_lshl_b32 s4, s68, 14")
    g("s_lshl_b32 s5, s69, 11")
    g("s_add_u32 s4, s4, s5")
    g("s_lshl_b32 s5, s3, 7")
    g("s_add_u32 s4, s4, s5")
    g(f"s_add_u32 s4, s4, {QP_OFF}")
    g("s_nop 7")
    g("v_cmp_gt_u32 vcc, 4, v3")
    g("s_and_saveexec_b64 s[10:11], vcc")
    for d in range(2):
        g(f"buffer_store_dwordx4 v[{80+4*d}:{83+4*d}], v51, s[64:67], s4 offen offset:{64*d}")
    g("s_mov_b64 exec, s[10:11]")
    g("s_cmp_ge_u32 s2, 224")
    g("s_cbranch_scc1 K0_pf" if os.environ.get("PFEND") else "s_cbranch_scc1 K0_done")
    g("s_lshl_b32 s4, s71, 6")
    g("v_add_u32 v52, s4, v48")
    g("ds_read_b128 v[96:99], v52")
    for mat in range(2):
        for d in range(2):
            for half in range(2):
                rr = 100 + (mat * 2 + d) * 4 + half * 2
                g(f"ds_read_b64_tr_b16 v[{rr}:{rr+1}], v{44+d} offset:{K0_FF + mat*8192 + half*4096}")
    g("s_waitcnt lgkmcnt(0)")
    for mat in range(2):
        for d in range(2):
            q = mat * 2 + d
            g(f"v_mfma_f32_16x16x32_bf16 v[{120+4*q}:{123+4*q}], v[{100+4*q}:{103+4*q}], v[96:99], 0")
    g("s_mov_b32 s4, 7168")
    g("v_mul_lo_u32 v54, v41, s4")
    g("v_lshl_add_u32 v54, v2, 4, v54")
    g("s_mul_i32 s4, s71, 57344")
    g("s_lshl_b32 s5, s70, 9")
    g("s_add_u32 s4, s4, s5")
    g("s_lshl_b32 s5, s3, 7")
    g("s_add_u32 s4, s4, s5")
    g(f"s_add_u32 s4, s4, {FFN_OFF}")
    g("s_nop 7")
    g("v_cmp_gt_u32 vcc, 4, v3")
    g("s_and_saveexec_b64 s[10:11], vcc")
    for mat in range(2):
        g(f"s_add_u32 s5, s4, {mat*28672}")
        for d in range(2):
            q = mat * 2 + d
            g(f"buffer_store_dwordx4 v[{120+4*q}:{123+4*q}], v54, s[64:67], s5 offen offset:{64*d}")
    g("s_mov_b64 exec, s[10:11]")
    if os.environ.get("PFEND"):
        g("K0_pf:")
        srd(g, 60, 18, 16 << 20)
        g("s_lshr_b32 s74, s2, 3")
        g("s_and_b32 s74, s74, 1")
        g("s_and_b32 s4, s2, 7")
        g("s_lshr_b32 s5, s2, 4")
        g("s_lshl_b32 s5, s5, 3")
        g("s_or_b32 s4, s4, s5")
        g("s_lshl_b32 s7, s4, 17")
        g("s_lshl_b32 s8, s74, 16")
        g("s_add_u32 s7, s7, s8")
        g("s_lshl_b32 s8, s3, 14")
        g("s_add_u32 s7, s7, s8")
        for n in range(int(os.environ["PFEND"])):
            g(f"buffer_load_dwordx4 v[{64+4*(n&3)}:{67+4*(n&3)}], v4, s[60:63], s7 offen nt")
            g("s_add_u32 s7, s7, 1024")
    if HST:
        g("K0_hst:")
        g(f"s_cmp_lg_u32 s2, {HWG}")
        g("s_cbranch_scc1 K0_done")
        g("s_cmp_lg_u32 s3, 0")
        g("s_cbranch_scc1 K0_done")
        g("s_waitcnt vmcnt(0)")
        g("s_memrealtime s[92:93]")
        srd(g, 60, 40, 256)
        g("s_waitcnt lgkmcnt(0)")
        g("s_mov_b64 exec, 1")
        g("v_mov_b32 v1, 0")
        g("v_mov_b32 v2, s90")
        g("v_mov_b32 v3, s92")
        g("buffer_store_dwordx2 v[2:3], v1, s[60:63], 0 offen")
    g("K0_done:")
    g("s_endpgm")


L_CNT = XR + 1792
_lbl = [0]
def signal(g, idx):
    g("s_mov_b64 exec, 1")
    g(f"ds_add_u32 v250, v251 offset:{4*idx}")
    g("s_mov_b64 exec, -1")
def lwait(g, idx, cnt, sleep=0):
    _lbl[0] += 1
    L = f"LW{_lbl[0]}"
    g(f"{L}:")
    if sleep:
        g(f"s_sleep {sleep}")
    g(f"ds_read_b32 v252, v250 offset:{4*idx}")
    g("s_waitcnt lgkmcnt(0)")
    g("v_readfirstlane_b32 s79, v252")
    g(f"s_cmp_lt_u32 s79, {cnt}")
    g(f"s_cbranch_scc1 {L}")

def gen_kernel(g):
    name = "k1_kernel"
    g.raw(f".globl {name}")
    g.raw(".p2align 8")
    g.raw(f".type {name},@function")
    g.raw(f"{name}:")
    g("s_cmp_ge_u32 s2, 256")
    g("s_cbranch_scc1 L_done")
    stamp(g, 0)
    if DEBUG:
        g("s_memtime s[86:87]")
    g("s_load_dwordx16 s[16:31], s[0:1], 0")
    g("s_load_dwordx8 s[32:39], s[0:1], 64")
    g("s_load_dwordx4 s[40:43], s[0:1], 96")
    g("v_lshrrev_b32 v1, 6, v0")
    g("v_and_b32 v0, 0xff, v0")
    g("v_readfirstlane_b32 s77, v1")
    g("v_and_b32 v1, 63, v0")
    g("v_lshrrev_b32 v2, 4, v1")
    g("v_and_b32 v3, 15, v1")
    g("v_lshrrev_b32 v40, 2, v3")
    g("v_and_b32 v41, 3, v3")
    g("v_lshlrev_b32 v4, 4, v1")
    g(f"v_mov_b32 v250, {L_CNT}")
    g("v_mov_b32 v251, 1")
    g("v_lshlrev_b32 v252, 2, v1")
    g(f"v_add_u32 v252, {L_CNT}, v252")
    g("v_mov_b32 v253, 0")
    g("ds_write_b32 v252, v253")
    g("s_and_b32 s3, s77, 3")
    g("s_lshr_b32 s77, s77, 2")
    g("s_and_b32 s68, s2, 7")
    g("s_lshl_b32 s68, s68, 2")
    g("s_lshr_b32 s4, s2, 3")
    g("s_and_b32 s4, s4, 3")
    g("s_add_u32 s68, s68, s4")
    g("s_lshr_b32 s69, s2, 5")
    g("s_lshr_b32 s74, s2, 3")
    g("s_and_b32 s74, s74, 1")
    g("s_and_b32 s4, s2, 7")
    g("s_lshr_b32 s5, s2, 4")
    g("s_lshl_b32 s5, s5, 3")
    g("s_or_b32 s4, s4, s5")
    g("s_lshr_b32 s75, s4, 5")
    g("s_and_b32 s76, s4, 31")
    g("s_waitcnt lgkmcnt(0)")
    g("s_barrier")
    srd(g, 64, 42, WS_SIZE)
    g("s_cmp_eq_u32 s77, 0")
    g("s_cbranch_scc0 L_loader")
    gen_compute(g)
    g("s_branch L_done")
    g("L_loader:")
    gen_loader(g)
    g("L_done:")
    g("s_endpgm")

def gen_loader(g):
    srd(g, 44, 18, 16 << 20)
    g("s_lshl_b32 s7, s75, 22")
    g("s_lshl_b32 s8, s76, 17")
    g("s_add_u32 s7, s7, s8")
    g("s_lshl_b32 s8, s3, 15")
    g("s_add_u32 s7, s7, s8")
    g(f"s_mul_i32 s8, s3, {32*RS}")
    for n in range(32):
        g("s_mov_b32 m0, s8")
        g(f"s_add_u32 s8, s8, {RS}")
        g("buffer_load_dwordx4 v4, s[44:47], s7 offen nt lds")
        g("s_add_u32 s7, s7, 1024")
    stamp(g, 4)
    g("s_and_b32 s5, s3, 1")
    g("s_lshl_b32 s5, s5, 3")
    g("v_lshlrev_b32 v5, 1, v2")
    g("v_add_u32 v5, s5, v5")
    g("v_xor_b32 v5, v5, v3")
    g("v_lshlrev_b32 v5, 4, v5")
    g("v_lshl_add_u32 v6, v2, 13, v5")
    srd(g, 48, 26, 32 * 131072)
    g("s_lshl_b32 s6, s68, 17")
    g("s_lshl_b32 s7, s3, 15")
    g("s_add_u32 s6, s6, s7")
    NW1 = int(os.environ.get("NW1", "0"))
    def wo_loads(lo, hi, tag):
        for jj in range(8):
            g(f"s_cmp_eq_u32 s69, {jj}")
            g(f"s_cbranch_scc1 LL_wo{tag}{jj}")
        for jj in range(8):
            g(f"LL_wo{tag}{jj}:")
            for n in range(lo, hi):
                r = (n + 4 * jj) & 31
                g(f"s_add_u32 s7, s6, {r*1024}")
                g(f"buffer_load_dwordx4 v[{64+4*r}:{67+4*r}], v4, s[48:51], s7 offen nt")
            g(f"s_branch LL_wod{tag}")
        g(f"LL_wod{tag}:")
    if NW1:
        wo_loads(0, NW1, "a")
    g(f"s_waitcnt vmcnt({NW1})")
    signal(g, 1)
    stamp(g, 5)
    if os.environ.get("WODLY"):
        lwait(g, int(os.environ["WODLY"]), 4, 2)
    wo_loads(NW1, 32, "b")
    srd(g, 44, 24, 512 * 8192)
    g("s_lshl_b32 s6, s68, 8")
    g("s_lshl_b32 s7, s69, 19")
    g("s_add_u32 s6, s6, s7")
    g("s_lshl_b32 s7, s3, 15")
    g("s_add_u32 s6, s6, s7")
    for n in range(4):
        g(f"buffer_load_dwordx4 v[{192+4*n}:{195+4*n}], v6, s[44:47], s6 offen nt")
        g("s_add_u32 s6, s6, 131072")
    stamp(g, 6)
    g("s_waitcnt vmcnt(0)")
    stamp(g, 7)
    lwait(g, 3, 4, 2)
    g("s_lshl_b32 s8, s3, 10")
    g(f"s_add_u32 s8, s8, {L_WUV}")
    g("v_add_u32 v7, s8, v4")
    for n in range(4):
        g(f"ds_write_b128 v7, v[{192+4*n}:{195+4*n}] offset:{n*4096}")
    lwait(g, 11, 4, 2)
    g(f"s_mul_i32 s8, s3, {32*RS}")
    g("v_add_u32 v7, s8, v4")
    for n in range(32):
        g(f"ds_write_b128 v7, v[{64+4*n}:{67+4*n}] offset:{n*RS}")
    g("s_waitcnt lgkmcnt(0)")
    signal(g, 6)
    stamp(g, 8)
    if DEBUG:
        g("s_cmp_lg_u32 s3, 0")
        g("s_cbranch_scc1 L_done")
    stamp_flush(g, 128)

def gen_compute(g):
    if os.environ.get("PRIO"):
        g("s_setprio 3")
    srd(g, 48, 22, 512 * 8192)
    srd(g, 52, 16, 4096)
    g("v_lshlrev_b32 v5, 3, v1")
    g("s_lshl_b32 s4, s68, 14")
    g("s_lshl_b32 s5, s3, 9")
    g("s_add_u32 s4, s4, s5")
    g(f"s_add_u32 s4, s4, {QP_OFF}")
    for p in range(8):
        g(f"buffer_load_dwordx2 v[{96+2*p}:{97+2*p}], v5, s[64:67], s4 offen offset:{2048*p if p < 2 else 0}" if p < 2 else f"buffer_load_dwordx2 v[{96+2*p}:{97+2*p}], v5, s[64:67], s5 offen offset:{2048*(p&1)}")
        if p & 1:
            g(f"s_add_u32 s5, s4, {2048*(p+1)}")
    g("s_lshl_b32 s6, s68, 8")
    g("s_lshl_b32 s7, s69, 6")
    g("s_lshl_b32 s8, s3, 4")
    g("s_add_u32 s7, s7, s8")
    g("v_add_u32 v7, s7, v3")
    g("v_lshlrev_b32 v7, 13, v7")
    g("v_lshl_add_u32 v7, v2, 4, v7")
    g("v_add_u32 v7, s6, v7")
    for ks in range(4):
        g(f"buffer_load_dwordx4 v[{64+4*ks}:{67+4*ks}], v7, s[48:51], 0 offen offset:{64*ks} nt")
    srd(g, 56, 36, 1792 * 1024)
    g("s_lshl_b32 s4, s2, 3")
    g("s_lshl_b32 s5, s3, 1")
    g("s_add_u32 s4, s4, s5")
    g("s_lshl_b32 s4, s4, 10")
    g("s_lshl_b32 s5, s3, 11")
    g(f"s_add_u32 s5, s5, {L_WD}")
    for i in range(2):
        g("s_mov_b32 m0, s5")
        g("s_add_u32 s5, s5, 1024")
        g("buffer_load_dwordx4 v4, s[56:59], s4 offen nt lds")
        g("s_add_u32 s4, s4, 1024")
    g("v_and_b32 v42, 1, v2")
    g("v_lshl_add_u32 v42, v42, 2, v40")
    g("v_lshl_add_u32 v43, v2, 2, v40")
    g("v_lshlrev_b32 v43, 8, v43")
    g("v_lshl_add_u32 v43, v41, 3, v43")
    g("s_lshl_b32 s4, s3, 8")
    g(f"s_add_u32 s4, s4, {L_QX}")
    g("v_lshlrev_b32 v49, 2, v1")
    g("v_add_u32 v49, s4, v49")
    g("v_lshlrev_b32 v50, 8, v41")
    g("v_lshl_add_u32 v50, v2, 4, v50")
    g(f"v_add_u32 v50, {L_QX}, v50")
    g("s_waitcnt vmcnt(6)")
    stamp(g, 1)
    for p in range(1, 8):
        g(f"v_add_f32 v96, v96, v{96+2*p}")
        g(f"v_add_f32 v97, v97, v{97+2*p}")
    g("v_cvt_pk_bf16_f32 v88, v96, v97")
    g("ds_write_b32 v49, v88")
    g("s_waitcnt lgkmcnt(0)")
    signal(g, 0)
    lwait(g, 0, 4)
    for ks in range(4):
        g(f"ds_read_b128 v[{96+4*ks}:{99+4*ks}], v50 offset:{64*ks}")
    g("s_waitcnt vmcnt(0) lgkmcnt(0)")
    g("v_mfma_f32_16x16x32_bf16 v[80:83], v[64:67], v[96:99], 0")
    for ks in range(1, 4):
        g(f"v_mfma_f32_16x16x32_bf16 v[80:83], v[{64+4*ks}:{67+4*ks}], v[{96+4*ks}:{99+4*ks}], v[80:83]")
    g("v_lshlrev_b32 v51, 15, v41")
    g("v_lshl_add_u32 v51, v2, 3, v51")
    g("s_lshl_b32 s4, s68, 10")
    g("s_lshl_b32 s5, s69, 7")
    g("s_add_u32 s4, s4, s5")
    g("s_lshl_b32 s5, s3, 5")
    g("s_add_u32 s4, s4, s5")
    g(f"s_add_u32 s4, s4, {QABS_OFF}")
    g("s_nop 7")
    g("v_cvt_pk_bf16_f32 v88, v80, v81")
    g("v_cvt_pk_bf16_f32 v89, v82, v83")
    g("v_cmp_gt_u32 vcc, 4, v3")
    g("s_and_saveexec_b64 s[10:11], vcc")
    g("buffer_store_dwordx2 v[88:89], v51, s[64:67], s4 offen sc1")
    g("s_mov_b64 exec, s[10:11]")
    stamp(g, 2)
    g("s_cmp_ge_u32 s2, 224")
    g("s_cbranch_scc1 LC_nf1")
    g("v_and_b32 v7, 7, v1")
    g("v_lshlrev_b32 v7, 2, v7")
    g("v_lshrrev_b32 v30, 3, v1")
    g("s_mov_b32 s4, 7168")
    g("v_mul_lo_u32 v30, v30, s4")
    g("v_add_u32 v7, v7, v30")
    g("s_mul_i32 s4, s3, 229376")
    g("s_lshl_b32 s5, s2, 5")
    g("s_add_u32 s4, s4, s5")
    g(f"s_add_u32 s4, s4, {FFN_OFF}")
    for i in range(4):
        g(f"buffer_load_dword v{232+i}, v7, s[64:67], s4 offen")
        g("s_add_u32 s4, s4, 57344")
    g("LC_nf1:")
    srd(g, 48, 30, 1024)
    g("s_lshr_b32 s4, s2, 6")
    g("s_lshl_b32 s4, s4, 10")
    g("buffer_load_dwordx4 v[236:239], v4, s[64:67], s4 offen")
    g("buffer_load_dwordx4 v[240:243], v4, s[48:51], 0 offen")
    g("v_and_b32 v246, 7, v1")
    g("v_lshlrev_b32 v246, 1, v246")
    g("s_and_b32 s5, s2, 63")
    g("s_lshl_b32 s5, s5, 4")
    g("s_add_u32 s78, s5, s4")
    g("buffer_load_ushort v244, v246, s[52:55], s78 offen")
    g("buffer_load_ushort v245, v246, s[64:67], s78 offen")
    g("s_waitcnt vmcnt(4)")
    g("s_cmp_ge_u32 s2, 224")
    g("s_cbranch_scc1 LC_nf2")
    g("v_add_f32 v232, v232, v233")
    g("v_add_f32 v234, v234, v235")
    g("v_add_f32 v232, v232, v234")
    g("v_lshlrev_b32 v22, 2, v0")
    g(f"v_add_u32 v22, {L_HB}, v22")
    g("ds_write_b32 v22, v232")
    g("LC_nf2:")
    g("s_waitcnt lgkmcnt(0)")
    signal(g, 7)
    lwait(g, 7, 4)
    g("v_lshlrev_b32 v36, 11, v41")
    g("v_lshl_add_u32 v36, v2, 4, v36")
    g("s_cmp_ge_u32 s2, 224")
    g("s_cbranch_scc1 LC_nf3")
    g("s_lshl_b32 s7, s2, 13")
    g("s_lshl_b32 s5, s3, 9")
    g("s_add_u32 s7, s7, s5")
    g(f"s_add_u32 s7, s7, {YPART_OFF}")
    g("v_and_b32 v22, 31, v1")
    g("v_lshlrev_b32 v22, 2, v22")
    g(f"v_add_u32 v22, {L_HB}, v22")
    for w in range(4):
        g(f"ds_read_b32 v{24+w}, v22 offset:{w*256}")
        g(f"ds_read_b32 v{28+w}, v22 offset:{w*256+128}")
    g("v_lshlrev_b32 v23, 10, v42")
    g("v_lshl_add_u32 v23, v41, 3, v23")
    g("s_lshl_b32 s4, s3, 8")
    g(f"s_add_u32 s4, s4, {L_WD}")
    g("v_add_u32 v23, s4, v23")
    for mt in range(8):
        g(f"ds_read_b64_tr_b16 v[{128+4*mt}:{129+4*mt}], v23 offset:{mt*32}")
    g("s_waitcnt lgkmcnt(8)")
    g("v_add_f32 v24, v24, v25\nv_add_f32 v26, v26, v27\nv_add_f32 v24, v24, v26")
    g("v_add_f32 v28, v28, v29\nv_add_f32 v30, v30, v31\nv_add_f32 v28, v28, v30")
    rb(g, 24, 25)
    rb(g, 28, 25)
    silu_inplace(g, 24, 25)
    rb(g, 24, 25)
    g("v_mul_f32 v24, v24, v28")
    g("v_cvt_pk_bf16_f32 v24, v24, v24")
    g("v_and_b32 v22, 31, v1")
    g("v_lshlrev_b32 v22, 1, v22")
    g("s_lshl_b32 s4, s3, 6")
    g(f"s_add_u32 s4, s4, {L_HF}")
    g("v_add_u32 v22, s4, v22")
    g("ds_write_b16 v22, v24")
    g("v_lshlrev_b32 v22, 4, v41")
    g("v_and_b32 v23, 1, v2")
    g("v_lshl_add_u32 v22, v23, 3, v22")
    g("v_add_u32 v22, s4, v22")
    g("s_waitcnt lgkmcnt(0)")
    g("ds_read_b64 v[32:33], v22")
    g("v_mov_b32 v34, 0\nv_mov_b32 v35, 0")
    for mt in range(8):
        g(f"v_mov_b32 v{130+4*mt}, v{128+4*mt}")
        g(f"v_mov_b32 v{131+4*mt}, v{129+4*mt}")
    g("v_cmp_gt_u32 vcc, 2, v2")
    g("s_waitcnt lgkmcnt(0)")
    g("v_cndmask_b32 v32, 0, v32, vcc")
    g("v_cndmask_b32 v33, 0, v33, vcc")
    g("s_nop 1")
    for mt in range(8):
        g(f"v_mfma_f32_16x16x32_bf16 v[{160+4*mt}:{163+4*mt}], v[{128+4*mt}:{131+4*mt}], v[32:35], 0")
    g("s_nop 7")
    g("v_cmp_gt_u32 vcc, 4, v3")
    g("s_and_saveexec_b64 s[10:11], vcc")
    for mt in range(8):
        g(f"buffer_store_dwordx4 v[{160+4*mt}:{163+4*mt}], v36, s[64:67], s7 offen offset:{mt*64} sc1")
    g("s_mov_b64 exec, s[10:11]")
    g("LC_nf3:")
    signal(g, 17)
    stamp(g, 19)
    g("s_lshl_b32 s6, s3, 2")
    for i in range(4):
        g(f"s_add_u32 s7, s6, {i}")
        g(f"v_xor_b32 v{24+i}, s7, v1")
        g(f"v_lshlrev_b32 v{24+i}, 4, v{24+i}")
        g("s_lshl_b32 s7, s7, 10")
        g(f"s_add_u32 s7, s7, {L_QA}")
        g(f"v_add_u32 v{24+i}, s7, v{24+i}")
    g("s_lshl_b32 s5, s75, 5")
    g("s_lshl_b32 s6, s74, 4")
    g("s_add_u32 s5, s5, s6")
    g("s_lshl_b32 s6, s3, 2")
    g("s_add_u32 s5, s5, s6")
    g("s_lshl_b32 s5, s5, 10")
    g(f"s_add_u32 s5, s5, {QABS_OFF}")
    g("s_mov_b32 s82, 0")
    if os.environ.get("LATEPOLL"):
        lwait(g, 1, 4, 2)
    else:
        pass
    g("LC_pollA:")
    g("s_sleep 8" if not os.environ.get("LATEPOLL") else "s_sleep 1")
    for i in range(4):
        g(f"buffer_load_dwordx4 v[{8+4*i}:{11+4*i}], v4, s[64:67], s5 offen offset:{1024*i} sc1")
    g("s_waitcnt vmcnt(0)")
    g("v_max3_u32 v28, v8, v9, v10")
    for i in range(6):
        g(f"v_max3_u32 v28, v28, v{11+2*i}, v{12+2*i}")
    g("v_max_u32 v28, v28, v23")
    g("v_cmp_eq_u32 vcc, -1, v28")
    g("s_add_u32 s82, s82, 1")
    g(f"s_cmp_gt_u32 s82, {SPIN_MAX}")
    g("s_cbranch_scc1 LC_pollAd")
    g("s_cbranch_vccnz LC_pollA")
    g("LC_pollAd:")
    stamp(g, 3)
    g("s_waitcnt vmcnt(0)")
    g("v_lshlrev_b32 v29, 12, v1")
    g("v_mov_b32 v30, 1")
    g("s_lshl_b32 s4, s2, 2")
    g("s_lshl_b32 s5, s3, 10")
    g("s_add_u32 s4, s4, s5")
    g(f"s_add_u32 s4, s4, {FLY_OFF}")
    g("s_mov_b64 exec, 0xffffffff")
    g("buffer_store_dword v30, v29, s[64:67], s4 offen sc1")
    g("s_mov_b64 exec, -1")
    lwait(g, 17, 4)
    for i in range(4):
        g(f"ds_write_b128 v{24+i}, v[{8+4*i}:{11+4*i}]")
    for i in range(4):
        g(f"v_add_u32 v6, {4*i}, v2")
        g("v_xor_b32 v6, v6, v3")
        g("v_lshlrev_b32 v6, 4, v6")
        g(f"v_lshl_add_u32 v{8+i}, v3, 10, v6")
        g(f"v_add_u32 v{8+i}, {L_QA}, v{8+i}")
    g("s_lshl_b32 s4, s3, 5")
    g("v_add_u32 v12, s4, v3")
    g(f"s_mov_b32 s4, {RS}")
    g("v_mul_lo_u32 v12, v12, s4")
    g("v_lshl_add_u32 v12, v2, 4, v12")
    for i in range(8):
        g(f"v_mov_b32 v{48+i}, 0")
    g("s_waitcnt lgkmcnt(0)")
    signal(g, 2)
    lwait(g, 2, 4)
    for s_ in range(16):
        g(f"ds_read_b128 v[{64+4*s_}:{67+4*s_}], v{8+(s_&3)} offset:{(s_>>2)*256}")
    lwait(g, 1, 4, 1)
    stamp(g, 4)
    def sissue(grp):
        e = grp & 1
        for kk in range(4):
            s_ = grp * 4 + kk
            for T in range(2):
                rr = 128 + e * 32 + (kk * 2 + T) * 4
                g(f"ds_read_b128 v[{rr}:{rr+3}], v12 offset:{T*16*RS + s_*64}")
    def scompute(grp):
        e = grp & 1
        for kk in range(4):
            s_ = grp * 4 + kk
            for T in range(2):
                rr = 128 + e * 32 + (kk * 2 + T) * 4
                g(f"v_mfma_f32_16x16x32_bf16 v[{48+4*T}:{51+4*T}], v[{rr}:{rr+3}], v[{64+4*s_}:{67+4*s_}], v[{48+4*T}:{51+4*T}]")
    sissue(0)
    for grp in range(4):
        if grp < 3:
            sissue(grp + 1)
            g("s_waitcnt lgkmcnt(8)")
        else:
            g("s_waitcnt lgkmcnt(0)")
        scompute(grp)
    g("v_lshlrev_b32 v13, 6, v3")
    g("v_lshl_add_u32 v14, v2, 2, v13")
    g("s_lshl_b32 s4, s3, 4")
    g("v_add_u32 v14, s4, v14")
    g(f"v_add_u32 v15, {L_MX}, v14")
    g(f"v_add_u32 v16, {L_MX}, v13")
    g("s_nop 3")
    for i in range(8):
        rb(g, 48 + i, 56)
        g(f"v_mul_f32 v{48+i}, 0x3db504f3, v{48+i}")
        rb(g, 48 + i, 56)
    g("v_max3_f32 v56, v48, v49, v50")
    g("v_max3_f32 v56, v56, v51, v52")
    g("v_max3_f32 v56, v56, v53, v54")
    g("v_max_f32 v56, v56, v55")
    g("ds_write_b32 v15, v56")
    g("s_waitcnt lgkmcnt(0)")
    signal(g, 3)
    lwait(g, 3, 4)
    for i in range(4):
        g(f"ds_read_b128 v[{128+4*i}:{131+4*i}], v16 offset:{16*i}")
    g("s_waitcnt lgkmcnt(0)")
    g("v_max3_f32 v57, v128, v129, v130")
    for i in range(6):
        g(f"v_max3_f32 v57, v57, v{131+2*i}, v{132+2*i}")
    g("v_max_f32 v57, v57, v143")
    for i in range(8):
        g(f"v_sub_f32 v{48+i}, v{48+i}, v57")
        g(f"v_mul_f32 v{48+i}, 0x3fb8aa3b, v{48+i}")
        g(f"v_exp_f32 v{48+i}, v{48+i}")
    g("s_nop 0")
    g("v_add_f32 v58, v48, v49")
    for i in range(2, 8):
        g(f"v_add_f32 v58, v58, v{48+i}")
    for i in range(4):
        g(f"v_cvt_pk_bf16_f32 v{60+i}, v{48+2*i}, v{49+2*i}")
    g(f"v_add_u32 v15, {L_LS}, v14")
    g("ds_write_b32 v15, v58")
    g("s_lshl_b32 s4, s3, 10")
    g(f"s_add_u32 s4, s4, {L_P}")
    g("v_add_u32 v17, s4, v4")
    g("ds_write_b128 v17, v[60:63]")
    g(f"v_add_u32 v17, {L_P}, v4")
    g("v_lshl_add_u32 v18, v2, 2, v40")
    g(f"s_mov_b32 s4, {RS}")
    g("v_mul_lo_u32 v18, v18, s4")
    g("s_lshl_b32 s4, s3, 8")
    g("v_add_u32 v18, s4, v18")
    g("v_lshl_add_u32 v20, v41, 4, v18")
    g(f"v_add_u32 v21, {64*RS}, v20")
    g("v_lshl_add_u32 v18, v41, 3, v18")
    g(f"v_add_u32 v19, {64*RS}, v18")
    g("s_waitcnt lgkmcnt(0)")
    signal(g, 4)
    lwait(g, 4, 4)
    stamp(g, 5)
    for u in range(4):
        g(f"ds_read_b128 v[{64+4*u}:{67+4*u}], v17 offset:{u*1024}")
    g(f"v_add_u32 v16, {L_LS}, v13")
    for i in range(4):
        g(f"ds_read_b128 v[{80+4*i}:{83+4*i}], v16 offset:{16*i}")
    def tr_pipeline(bfrag, accbase, tmpbase, areg, coloff):
        def pissue(ct):
            e = ct & 1
            for u in range(4):
                for half in range(2):
                    rr = tmpbase + e * 16 + u * 4 + half * 2
                    off = (32 * (u & 1) + 16 * half) * RS + coloff(ct)
                    g(f"ds_read_b64_tr_b16 v[{rr}:{rr+1}], v{areg + (u>>1)} offset:{off}")
        def pcompute(ct):
            e = ct & 1
            for u in range(4):
                rr = tmpbase + e * 16 + u * 4
                c = "0" if u == 0 else f"v[{accbase+4*ct}:{accbase+3+4*ct}]"
                g(f"v_mfma_f32_16x16x32_bf16 v[{accbase+4*ct}:{accbase+3+4*ct}], v[{rr}:{rr+3}], v[{bfrag+4*u}:{bfrag+3+4*u}], {c}")
        pissue(0)
        for ct in range(8):
            if ct < 7:
                pissue(ct + 1)
                g("s_waitcnt lgkmcnt(8)")
            else:
                g("s_waitcnt lgkmcnt(0)")
            pcompute(ct)
    tr_pipeline(64, 192, 128, 20, lambda ct: (ct >> 1) * 64 + (ct & 1) * 8)
    signal(g, 11)
    g("v_add_f32 v59, v80, v81")
    for i in range(2, 16):
        g(f"v_add_f32 v59, v59, v{80+i}")
    g("v_mov_b32 v58, v57")
    g("v_lshlrev_b32 v22, 17, v3")
    g("v_lshl_add_u32 v22, v2, 4, v22")
    g("s_lshl_b32 s4, s74, 21")
    g("s_lshl_b32 s5, s3, 15")
    g("s_add_u32 s4, s4, s5")
    g("s_lshl_b32 s5, s75, 12")
    g("s_add_u32 s4, s4, s5")
    g("s_lshl_b32 s5, s76, 7")
    g("s_add_u32 s4, s4, s5")
    g(f"s_add_u32 s4, s4, {OPART_OFF}")
    g("s_add_u32 s5, s4, 16384")
    for p in range(4):
        for q in range(4):
            g(f"v_cvt_pk_bf16_f32 v{128+4*p+q}, v{192+8*p+2*q}, v{193+8*p+2*q}")
        g(f"buffer_store_dwordx4 v[{128+4*p}:{131+4*p}], v22, s[64:67], s{4+(p>>1)} offen offset:{(p&1)*64} sc1")
    stamp(g, 17)
    g("v_lshlrev_b32 v21, 12, v3")
    g("s_lshl_b32 s4, s74, 16")
    g("s_lshl_b32 s5, s3, 10")
    g("s_add_u32 s4, s4, s5")
    g("s_lshl_b32 s5, s75, 8")
    g("s_add_u32 s4, s4, s5")
    g("s_lshl_b32 s5, s76, 3")
    g("s_add_u32 s4, s4, s5")
    g(f"s_add_u32 s4, s4, {ML_OFF}")
    g("s_waitcnt vmcnt(0)")
    g("s_mov_b64 exec, 0xffff")
    g("buffer_store_dwordx2 v[58:59], v21, s[64:67], s4 offen sc1")
    g("s_mov_b64 exec, -1")
    stamp(g, 6)
    g("s_lshr_b32 s80, s2, 6")
    g("s_and_b32 s81, s2, 63")
    g("v_and_b32 v230, 7, v1")
    g("v_lshlrev_b32 v230, 2, v230")
    g("v_lshrrev_b32 v5, 3, v1")
    g("v_lshl_add_u32 v230, v5, 13, v230")
    g("s_lshl_b32 s4, s3, 19")
    g("s_lshl_b32 s5, s80, 11")
    g("s_add_u32 s4, s4, s5")
    g("s_lshl_b32 s5, s81, 5")
    g("s_add_u32 s83, s4, s5")
    g("s_and_b32 s4, s2, 31")
    g("s_lshl_b32 s4, s4, 12")
    g("s_lshr_b32 s5, s81, 4")
    g("s_lshl_b32 s5, s5, 10")
    g("s_add_u32 s4, s4, s5")
    g("s_lshl_b32 s5, s3, 8")
    g("s_add_u32 s15, s4, s5")
    g(f"s_add_u32 s4, s15, {FLY_OFF}")
    g("v_lshlrev_b32 v231, 2, v1")
    g("s_mov_b32 s82, 0")
    g("LC_pollY:")
    g("buffer_load_dword v6, v231, s[64:67], s4 offen sc1")
    g("s_waitcnt vmcnt(0)")
    g("v_cmp_ne_u32 vcc, 1, v6")
    g("s_add_u32 s82, s82, 1")
    g(f"s_cmp_gt_u32 s82, {SPIN_MAX}")
    g("s_cbranch_scc1 LC_pollYd")
    g("s_cbranch_vccnz LC_pollY")
    g("LC_pollYd:")
    g(f"s_add_u32 s6, s83, {YPART_OFF}")
    for i in range(4, 8):
        g(f"v_mov_b32 v{24+i}, 0")
    for i in range(8):
        if i == 4:
            g("s_cmp_eq_u32 s3, 3")
            g("s_cbranch_scc1 LC_y8")
        g(f"buffer_load_dword v{24+i}, v230, s[64:67], s6 offen sc1")
        g("s_add_u32 s6, s6, 65536")
    g("LC_y8:")
    g("s_waitcnt vmcnt(0)")
    for i in range(1, 8):
        g(f"v_add_f32 v24, v24, v{24+i}")
    g("v_mov_b32 v229, v24")
    stamp(g, 18)
    g("v_lshlrev_b32 v36, 11, v41")
    g("v_lshl_add_u32 v36, v2, 4, v36")
    stamp(g, 19)
    g("v_and_b32 v5, 31, v1")
    g("v_lshlrev_b32 v5, 3, v5")
    g("s_lshl_b32 s80, s68, 12")
    g("s_lshr_b32 s5, s69, 1")
    g("s_lshl_b32 s5, s5, 10")
    g("s_add_u32 s80, s80, s5")
    g("s_lshl_b32 s5, s3, 8")
    g("s_add_u32 s80, s80, s5")
    g(f"s_add_u32 s80, s80, {ML_OFF}")
    g("v_lshlrev_b32 v6, 1, v1")
    g("s_lshl_b32 s81, s68, 17")
    g("s_lshl_b32 s5, s69, 14")
    g("s_add_u32 s81, s81, s5")
    g("s_lshl_b32 s5, s3, 12")
    g("s_add_u32 s81, s81, s5")
    g(f"s_add_u32 s81, s81, {OPART_OFF}")
    g("s_mov_b32 s82, 0")
    g("LC_pollml:")
    if not os.environ.get("NOSLEEP"):
        g("s_sleep 2")
    g("buffer_load_dwordx2 v[8:9], v5, s[64:67], s80 offen sc1")
    g("s_waitcnt vmcnt(0)")
    g("v_add_f32 v10, v8, v9")
    g("v_cmp_u_f32 vcc, v10, v10")
    g("s_add_u32 s82, s82, 1")
    g(f"s_cmp_gt_u32 s82, {SPIN_MAX}")
    g("s_cbranch_scc1 LC_pollO")
    g("s_cbranch_vccnz LC_pollml")
    g("LC_pollO:")
    stamp(g, 14)
    for kc in range(32):
        g(f"buffer_load_ushort v{64+kc}, v6, s[64:67], s81 offen offset:{kc*128} sc1")
    g("v_mov_b32 v17, v8")
    dpp_reduce(g, "v_max_f32", 17, 72)
    g("v_subrev_f32 v17, s72, v8")
    g("v_mul_f32 v17, 0x3fb8aa3b, v17")
    g("v_exp_f32 v17, v17")
    g("s_nop 0")
    g("v_mul_f32 v10, v17, v9")
    dpp_reduce(g, "v_add_f32", 10, 73)
    g("v_mov_b32 v20, s73")
    g("v_mul_f32 v20, 0.5, v20")
    g("v_rcp_f32 v20, v20")
    g("v_and_b32 v21, 0x23, v1")
    g("v_bfe_u32 v22, v1, 2, 2")
    g("v_lshl_add_u32 v21, v22, 3, v21")
    g("v_bfe_u32 v22, v1, 4, 1")
    g("v_lshl_add_u32 v21, v22, 2, v21")
    g("v_lshlrev_b32 v21, 1, v21")
    g("s_lshl_b32 s12, s3, 7")
    g(f"s_add_u32 s12, s12, {L_OL}")
    g("v_add_u32 v21, s12, v21")
    g("v_mov_b32 v11, 0")
    for q in range(4):
        for i in range(8):
            g(f"v_readlane_b32 s{4+i}, v17, {8*q+i}")
        g(f"s_waitcnt vmcnt({24-8*q})")
        for i in range(8):
            kc = 8 * q + i
            g(f"v_lshlrev_b32 v{64+kc}, 16, v{64+kc}")
            g(f"v_fmac_f32 v11, s{4+i}, v{64+kc}")
    stamp(g, 15)
    g("v_mul_f32 v11, v11, v20")
    g("v_cvt_pk_bf16_f32 v11, v11, v11")
    g("ds_write_b16 v21, v11")
    g("s_waitcnt lgkmcnt(0)")
    signal(g, 8)
    lwait(g, 6, 4, 1)
    g(f"v_add_u32 v24, {L_WUV}, v43")
    for dt in range(8):
        g(f"v_xor_b32 v25, {dt}, v42")
        g("v_lshl_add_u32 v25, v25, 5, v24")
        for s_ in range(2):
            for half in range(2):
                rr = 128 + dt * 8 + s_ * 4 + half * 2
                g(f"ds_read_b64_tr_b16 v[{rr}:{rr+1}], v25 offset:{s_*8192 + half*4096}")
        if dt % 2 == 1:
            g("s_waitcnt lgkmcnt(4)")
    g("v_lshlrev_b32 v22, 7, v41")
    g("v_lshl_add_u32 v22, v2, 4, v22")
    g(f"v_add_u32 v22, {L_OL}, v22")
    lwait(g, 8, 4)
    stamp(g, 7)
    g("ds_read_b128 v[44:47], v22")
    g("ds_read_b128 v[48:51], v22 offset:64")
    g("s_waitcnt lgkmcnt(0)")
    for dt in range(8):
        g(f"v_mfma_f32_16x16x32_bf16 v[{96+4*dt}:{99+4*dt}], v[{128+8*dt}:{131+8*dt}], v[44:47], 0")
        g(f"v_mfma_f32_16x16x32_bf16 v[{96+4*dt}:{99+4*dt}], v[{132+8*dt}:{135+8*dt}], v[48:51], v[{96+4*dt}:{99+4*dt}]")
    g("s_nop 7")
    for dt in range(8):
        g(f"v_cvt_pk_bf16_f32 v{44+2*dt}, v{96+4*dt}, v{97+4*dt}")
        g(f"v_cvt_pk_bf16_f32 v{45+2*dt}, v{98+4*dt}, v{99+4*dt}")
    tr_pipeline(44, 192, 64, 18, lambda ct: ct * 32)
    g("s_lshl_b32 s4, s2, 13")
    g("s_lshl_b32 s5, s3, 9")
    g("s_add_u32 s4, s4, s5")
    g(f"s_add_u32 s6, s4, {SPART_OFF}")
    g("s_nop 7")
    g("v_cmp_gt_u32 vcc, 4, v3")
    g("s_and_saveexec_b64 s[10:11], vcc")
    for mt in range(8):
        g(f"buffer_store_dwordx4 v[{192+4*mt}:{195+4*mt}], v36, s[64:67], s6 offen offset:{mt*64} sc1")
    g("s_mov_b64 exec, s[10:11]")
    stamp(g, 8)
    g("v_mov_b32 v8, 0")
    for i in range(4):
        g(f"v_lshlrev_b32 v9, 16, v{236+i}")
        g(f"v_lshlrev_b32 v10, 16, v{240+i}")
        g("v_fmac_f32 v8, v9, v10")
        g(f"v_and_b32 v9, 0xffff0000, v{236+i}")
        g(f"v_and_b32 v10, 0xffff0000, v{240+i}")
        g("v_fmac_f32 v8, v9, v10")
    dpp_reduce(g, "v_add_f32", 8, 72)
    g("v_mov_b32 v13, s72")
    rb(g, 13, 12)
    g("v_mul_f32 v13, 0xbfb8aa3b, v13")
    g("v_exp_f32 v13, v13")
    g("s_nop 0")
    g("v_add_f32 v13, 1.0, v13")
    g("v_rcp_f32 v13, v13")
    g("s_nop 0")
    rb(g, 13, 12)
    g("v_lshlrev_b32 v245, 16, v245")
    g("v_lshlrev_b32 v244, 16, v244")
    g("s_waitcnt vmcnt(0)")
    g("v_lshlrev_b32 v5, 12, v1")
    g("v_mov_b32 v6, 1")
    g("s_lshl_b32 s4, s2, 2")
    g("s_lshl_b32 s5, s3, 10")
    g("s_add_u32 s4, s4, s5")
    g(f"s_add_u32 s4, s4, {FLC_OFF}")
    g("s_mov_b64 exec, 0xffffffff")
    g("buffer_store_dword v6, v5, s[64:67], s4 offen sc1")
    g("s_mov_b64 exec, -1")
    g(f"s_add_u32 s4, s15, {FLC_OFF}")
    g("s_mov_b32 s82, 0")
    g("LC_pollC:")
    if not os.environ.get("NOSLEEP"):
        g("s_sleep 1")
    g("buffer_load_dword v6, v231, s[64:67], s4 offen sc1")
    g("s_waitcnt vmcnt(0)")
    g("v_cmp_ne_u32 vcc, 1, v6")
    g("s_add_u32 s82, s82, 1")
    g(f"s_cmp_gt_u32 s82, {SPIN_MAX}")
    g("s_cbranch_scc1 LC_pollC2")
    g("s_cbranch_vccnz LC_pollC")
    g("LC_pollC2:")
    stamp(g, 20)
    g(f"s_add_u32 s5, s83, {SPART_OFF}")
    for i in range(8):
        g(f"buffer_load_dword v{16+i}, v230, s[64:67], s5 offen sc1")
        g("s_add_u32 s5, s5, 65536")
    g("v_mov_b32 v24, v229")
    g("s_waitcnt vmcnt(0)")
    for i in range(1, 8):
        g(f"v_add_f32 v16, v16, v{16+i}")
    stamp(g, 16)
    for msk in (8, 16):
        g(f"ds_swizzle_b32 v17, v16 offset:{(msk<<10)|0x1f}")
        g(f"ds_swizzle_b32 v25, v24 offset:{(msk<<10)|0x1f}")
        g("s_waitcnt lgkmcnt(0)")
        g("v_add_f32 v16, v16, v17")
        g("v_add_f32 v24, v24, v25")
    g("v_mov_b32 v17, v16")
    g("v_mov_b32 v25, v24")
    g("s_nop 1")
    g("v_permlane32_swap_b32 v16, v17")
    g("v_permlane32_swap_b32 v24, v25")
    g("s_nop 1")
    g("v_add_f32 v16, v16, v17")
    g("v_add_f32 v24, v24, v25")
    g("v_and_b32 v11, 7, v1")
    g("v_lshlrev_b32 v11, 2, v11")
    g(f"v_add_u32 v11, {L_FIN}, v11")
    g("s_lshl_b32 s4, s3, 6")
    g("v_add_u32 v12, s4, v11")
    g("ds_write_b32 v12, v16")
    g("ds_write_b32 v12, v24 offset:32")
    g("s_waitcnt lgkmcnt(0)")
    signal(g, 10)
    g("s_cmp_lg_u32 s3, 0")
    g("s_cbranch_scc1 L_done")
    lwait(g, 10, 4)
    for w in range(4):
        g(f"ds_read_b32 v{64+w}, v11 offset:{w*64}")
        g(f"ds_read_b32 v{96+w}, v11 offset:{w*64+32}")
    srd(g, 48, 38, 4096)
    g("s_waitcnt lgkmcnt(0)")
    g("v_add_f32 v64, v64, v65\nv_add_f32 v66, v66, v67\nv_add_f32 v64, v64, v66")
    g("v_add_f32 v96, v96, v97\nv_add_f32 v98, v98, v99\nv_add_f32 v96, v96, v98")
    rb(g, 64, 12)
    rb(g, 96, 12)
    g("v_mul_f32 v96, v96, v13")
    rb(g, 96, 12)
    g("v_add_f32 v96, v245, v96")
    rb(g, 96, 12)
    silu_inplace(g, 96, 14)
    rb(g, 96, 12)
    g("v_mul_f32 v64, v64, v96")
    rb(g, 64, 12)
    g("v_add_f32 v64, v244, v64")
    g("v_cvt_pk_bf16_f32 v64, v64, v64")
    g("s_mov_b64 exec, 0xff")
    g("buffer_store_short v64, v246, s[48:51], s78 offen")
    stamp_flush(g, 0)

def kdesc(g, name, vgpr):
    g.raw(".p2align 6")
    g.raw(f".amdhsa_kernel {name}")
    g.raw(f"  .amdhsa_next_free_vgpr {vgpr}")
    g.raw("  .amdhsa_next_free_sgpr 102")
    g.raw(f"  .amdhsa_accum_offset {vgpr}")
    g.raw("  .amdhsa_group_segment_fixed_size 0")
    g.raw("  .amdhsa_kernarg_size 112")
    g.raw("  .amdhsa_user_sgpr_count 2")
    g.raw("  .amdhsa_user_sgpr_kernarg_segment_ptr 1")
    g.raw("  .amdhsa_system_sgpr_workgroup_id_x 1")
    g.raw("  .amdhsa_float_denorm_mode_32 3")
    g.raw(".end_amdhsa_kernel")

def main(out):
    g = G()
    g.L = [f"; @launch kernel=k0_kernel grid=(256,1,1) block=(256,1,1) lds={K0_LDS}",
           f"; @launch kernel=k1_kernel grid=(256,1,1) block=(512,1,1) lds={LDS_TOTAL}" if not os.environ.get("ONLYK0") else ";",
           '.amdgcn_target "amdgcn-amd-amdhsa--gfx950"', ".text"]
    gen_k0(g)
    gen_kernel(g)
    g.raw('.section .rodata,"a"')
    kdesc(g, "k0_kernel", 136)
    kdesc(g, "k1_kernel", 256)
    open(out, "w").write("\n".join(g.L) + "\n")

if __name__ == "__main__":
    if len(sys.argv) > 2 and sys.argv[2] == "debug":
        DEBUG = True
    main(sys.argv[1])
```

```python
import sys, os
NAME = "recurrent_scan__compressed_kv_cla__moe_arch_mod__decode"

XN_OFF   = 0x0
QP_OFF   = 0x140000
QABS_OFF = 0x10000
FFN_OFF  = 0x40000
OPART_OFF= 0x200000
SPART_OFF= 0x600000
YPART_OFF= 0x800000
ML_OFF   = 0xA00000
FLC_OFF  = 0xA20000
FLY_OFF  = 0xA40000
STAMP_OFF= 0xC00000
WS_SIZE  = 0x1000000
DEBUG = False
SPIN_MAX = 200000

RS = 1056
R0, S1, XR, S2 = 0, 135168, 151552, 155648
LDS_TOTAL = 163840
L_WQ, L_FF, L_XN, L_QX = R0, S1, XR, S2
L_CKV, L_QA, L_P, L_MX, L_LS = R0, S1, S2, S2 + 4096, S2 + 5120
L_WO, L_WUV, L_WD, L_OL, L_HB, L_HF, L_FIN = R0, S1, S1, XR, XR + 512, XR + 1536, XR + 2048

class G:
    def __init__(self):
        self.L = []
    def __call__(self, s):
        for line in s.strip("\n").split("\n"):
            self.L.append("    " + line.strip() if not line.strip().endswith(":") else line.strip())
    def raw(self, s):
        self.L.append(s)

def srd(g, d, base, size):
    g(f"s_mov_b32 s{d}, s{base}")
    g(f"s_and_b32 s{d+1}, s{base+1}, 0xffff")
    g(f"s_mov_b32 s{d+2}, 0x{size:x}")
    g(f"s_mov_b32 s{d+3}, 0x00020000")

def dpp_reduce(g, op, v, sdst):
    for sh in (1, 2, 4, 8):
        g("s_nop 1")
        g(f"{op}_dpp v{v}, v{v}, v{v} row_shr:{sh} row_mask:0xf bank_mask:0xf")
    g("s_nop 1")
    g(f"{op}_dpp v{v}, v{v}, v{v} row_bcast:15 row_mask:0xa bank_mask:0xf")
    g("s_nop 1")
    g(f"{op}_dpp v{v}, v{v}, v{v} row_bcast:31 row_mask:0xc bank_mask:0xf")
    g("s_nop 1")
    g(f"v_readlane_b32 s{sdst}, v{v}, 63")
    g("s_nop 3")

def rb(g, v, tmp):
    g(f"v_cvt_pk_bf16_f32 v{tmp}, v{v}, v{v}")
    g(f"v_lshlrev_b32 v{v}, 16, v{tmp}")

NSTAMP = 32
def stamp(g, i):
    if DEBUG:
        g("s_memrealtime s[84:85]")
        g("s_waitcnt lgkmcnt(0)")
        g(f"v_writelane_b32 v247, s84, {i}")
HST = bool(os.environ.get("HST"))
HWG = int(os.environ.get("HWG", "0"))
def stamp_flush(g, off):
    if DEBUG and HST:
        if off != 0:
            return
        g("s_waitcnt vmcnt(0) lgkmcnt(0)")
        stamp(g, 31)
        g(f"s_cmp_lg_u32 s2, {HWG}")
        g("s_cbranch_scc1 L_done")
        g("s_mov_b32 s60, s40")
        g("s_and_b32 s61, s41, 0xffff")
        g("s_mov_b32 s62, 256")
        g("s_mov_b32 s63, 0x00020000")
        g("s_mov_b64 exec, 1")
        g("v_mov_b32 v1, 0")
        for k, i in enumerate([0, 1, 2, 3, 4, 5, 17, 6, 14, 15, 7, 8, 20, 31]):
            g(f"v_readlane_b32 s4, v247, {i}")
            g("v_readlane_b32 s5, v247, 0")
            g("s_nop 3")
            g("s_sub_u32 s4, s4, s5")
            g("v_mov_b32 v2, s4")
            g(f"buffer_store_dword v2, v1, s[60:63], 0 offen offset:{8+4*k}")
        return
    if DEBUG:
        g("s_waitcnt vmcnt(0) lgkmcnt(0)")
        stamp(g, 31)
        g("s_memtime s[84:85]")
        g("s_waitcnt lgkmcnt(0)")
        g("s_sub_u32 s84, s84, s86")
        g("v_writelane_b32 v247, s84, 30")
        g("s_lshl_b32 s6, s2, 8")
        g(f"s_add_u32 s6, s6, {STAMP_OFF + off}")
        g("s_mov_b64 exec, 0xffffffff")
        g("v_and_b32 v1, 63, v0")
        g("v_lshlrev_b32 v1, 2, v1")
        g("buffer_store_dword v247, v1, s[64:67], s6 offen")

def layernorm_row(g, vx, vt, s0):
    f = [vt + i for i in range(8)]
    T = vt + 8
    for i in range(4):
        g(f"v_lshlrev_b32 v{f[2*i]}, 16, v{vx+i}")
        g(f"v_and_b32 v{f[2*i+1]}, 0xffff0000, v{vx+i}")
    g(f"v_add_f32 v{T}, v{f[0]}, v{f[1]}")
    for i in range(2, 8):
        g(f"v_add_f32 v{T}, v{T}, v{f[i]}")
    dpp_reduce(g, "v_add_f32", T, s0)
    g(f"v_mov_b32 v{T+1}, s{s0}")
    g(f"v_mul_f32 v{T+1}, 0x3b000000, v{T+1}")
    g(f"v_sub_f32 v{T+2}, v{f[0]}, v{T+1}")
    g(f"v_mul_f32 v{T}, v{T+2}, v{T+2}")
    for i in range(1, 8):
        g(f"v_sub_f32 v{T+2}, v{f[i]}, v{T+1}")
        g(f"v_fmac_f32 v{T}, v{T+2}, v{T+2}")
    dpp_reduce(g, "v_add_f32", T, s0)
    g(f"v_mov_b32 v{T+2}, s{s0}")
    g(f"v_mul_f32 v{T+2}, 0x3b000000, v{T+2}")
    rb(g, T + 1, T + 3)
    rb(g, T + 2, T + 3)
    g(f"v_add_f32 v{T+2}, 0x3727c5ac, v{T+2}")
    rb(g, T + 2, T + 3)
    g(f"v_sqrt_f32 v{T+2}, v{T+2}")
    g("s_nop 0")
    rb(g, T + 2, T + 3)
    g(f"v_rcp_f32 v{T+3}, v{T+2}")
    g("s_nop 0")
    for i in range(8):
        g(f"v_sub_f32 v{f[i]}, v{f[i]}, v{T+1}")
        rb(g, f[i], T + 4)
        g(f"v_mul_f32 v{T+4}, v{f[i]}, v{T+3}")
        g(f"v_fma_f32 v{T+5}, -v{T+4}, v{T+2}, v{f[i]}")
        g(f"v_fma_f32 v{f[i]}, v{T+5}, v{T+3}, v{T+4}")
        rb(g, f[i], T + 4)

def silu_inplace(g, v, t):
    g(f"v_mul_f32 v{t}, 0xbfb8aa3b, v{v}")
    g(f"v_exp_f32 v{t}, v{t}")
    g("s_nop 0")
    g(f"v_add_f32 v{t}, 1.0, v{t}")
    g(f"v_rcp_f32 v{t}, v{t}")
    g("s_nop 0")
    g(f"v_mul_f32 v{v}, v{v}, v{t}")


K0_WQ, K0_FF, K0_XN = 0, 16384, 32768
K0_LDS = 36864
def gen_k0(g):
    name = "k0_kernel"
    g.raw(f".globl {name}")
    g.raw(".p2align 8")
    g.raw(f".type {name},@function")
    g.raw(f"{name}:")
    g("s_cmp_ge_u32 s2, 256")
    g("s_cbranch_scc1 K0_done")
    if HST:
        g("s_memrealtime s[90:91]")
    g("s_load_dwordx16 s[16:31], s[0:1], 0")
    g("s_load_dwordx8 s[32:39], s[0:1], 64")
    g("s_load_dwordx4 s[40:43], s[0:1], 96")
    g("v_lshrrev_b32 v1, 6, v0")
    g("v_and_b32 v0, 0xff, v0")
    g("v_readfirstlane_b32 s3, v1")
    g("v_and_b32 v1, 63, v0")
    g("v_lshrrev_b32 v2, 4, v1")
    g("v_and_b32 v3, 15, v1")
    g("v_lshrrev_b32 v40, 2, v3")
    g("v_and_b32 v41, 3, v3")
    g("v_lshlrev_b32 v4, 4, v1")
    g("s_and_b32 s68, s2, 7")
    g("s_lshl_b32 s68, s68, 2")
    g("s_lshr_b32 s4, s2, 3")
    g("s_and_b32 s4, s4, 3")
    g("s_add_u32 s68, s68, s4")
    g("s_lshr_b32 s69, s2, 5")
    g("s_mov_b32 s4, 0x12492493")
    g("s_mul_hi_u32 s71, s2, s4")
    g("s_mul_i32 s4, s71, 14")
    g("s_sub_u32 s70, s2, s4")
    g("s_waitcnt lgkmcnt(0)")
    srd(g, 64, 42, WS_SIZE)
    srd(g, 44, 20, 512 * 8192)
    srd(g, 48, 32, 512 * 3584)
    srd(g, 52, 34, 512 * 3584)
    srd(g, 56, 16, 4096)
    g("s_lshl_b32 s4, s3, 10")
    g("buffer_load_dwordx4 v[8:11], v4, s[56:59], s4 offen")
    g("s_and_b32 s5, s3, 1")
    g("s_lshl_b32 s5, s5, 3")
    g("v_lshlrev_b32 v5, 1, v2")
    g("v_add_u32 v5, s5, v5")
    g("v_xor_b32 v5, v5, v3")
    g("v_lshlrev_b32 v5, 4, v5")
    g("v_lshl_add_u32 v6, v2, 13, v5")
    g("s_lshl_b32 s6, s68, 8")
    g("s_lshl_b32 s7, s69, 19")
    g("s_add_u32 s6, s6, s7")
    g("s_lshl_b32 s7, s3, 15")
    g("s_add_u32 s6, s6, s7")
    g("s_lshl_b32 s8, s3, 10")
    for n in range(4):
        g("s_mov_b32 m0, s8")
        g("s_add_u32 s8, s8, 4096")
        g("buffer_load_dwordx4 v6, s[44:47], s6 offen nt lds")
        g("s_add_u32 s6, s6, 131072")
    g("s_cmp_ge_u32 s2, 224")
    g("s_cbranch_scc1 K0_noffn")
    g("s_mov_b32 s8, 3584")
    g("v_mul_lo_u32 v12, v2, s8")
    g("v_add_u32 v12, v12, v5")
    g("s_lshl_b32 s7, s70, 8")
    g("s_lshl_b32 s9, s71, 5")
    g("s_lshl_b32 s10, s3, 2")
    g("s_add_u32 s9, s9, s10")
    g("s_mul_i32 s9, s9, 3584")
    g("s_add_u32 s7, s7, s9")
    g("s_lshl_b32 s8, s3, 10")
    g(f"s_add_u32 s8, s8, {K0_FF}")
    for mat in range(2):
        for ii in range(2):
            g(f"s_add_u32 s10, s8, {mat*8192 + ii*4096}")
            g("s_mov_b32 m0, s10")
            g(f"s_add_u32 s9, s7, {ii*16*3584}")
            g(f"buffer_load_dwordx4 v12, s[{48+4*mat}:{51+4*mat}], s9 offen nt lds")
    g("K0_noffn:")
    if os.environ.get("PFCKV"):
        srd(g, 60, 18, 16 << 20)
        g("s_lshr_b32 s74, s2, 3")
        g("s_and_b32 s74, s74, 1")
        g("s_and_b32 s4, s2, 7")
        g("s_lshr_b32 s5, s2, 4")
        g("s_lshl_b32 s5, s5, 3")
        g("s_or_b32 s4, s4, s5")
        g("s_lshl_b32 s7, s4, 17")
        g("s_lshl_b32 s8, s74, 16")
        g("s_add_u32 s7, s7, s8")
        g("s_lshl_b32 s8, s3, 14")
        g("s_add_u32 s7, s7, s8")
        for n in range(16):
            g(f"buffer_load_dwordx4 v[{64+4*(n&3)}:{67+4*(n&3)}], v4, s[60:63], s7 offen" + os.environ["PFCKV"].replace("_", " "))
            g("s_add_u32 s7, s7, 1024")
    g("s_waitcnt vmcnt(4)")
    layernorm_row(g, 8, 20, 72)
    for i in range(4):
        g(f"v_cvt_pk_bf16_f32 v{36+i}, v{20+2*i}, v{21+2*i}")
    g("v_lshrrev_b32 v14, 2, v1")
    g("v_lshlrev_b32 v14, 6, v14")
    g("v_and_b32 v15, 1, v1")
    g("v_lshl_add_u32 v14, v15, 5, v14")
    g("v_bfe_u32 v15, v1, 1, 1")
    g("v_lshl_add_u32 v14, v15, 3, v14")
    g("s_lshl_b32 s4, s3, 10")
    g(f"s_add_u32 s4, s4, {K0_XN}")
    g("v_add_u32 v14, s4, v14")
    g("ds_write_b64 v14, v[36:37]")
    g("ds_write_b64 v14, v[38:39] offset:16")
    g("s_cmp_lg_u32 s2, 0")
    g("s_cbranch_scc1 K0_noxn")
    g("s_lshl_b32 s4, s3, 10")
    g("buffer_store_dwordx4 v[36:39], v4, s[64:67], s4 offen")
    g("K0_noxn:")
    g("v_and_b32 v42, 1, v2")
    g("v_lshl_add_u32 v42, v42, 2, v40")
    g("v_lshl_add_u32 v43, v2, 2, v40")
    g("v_lshlrev_b32 v43, 8, v43")
    g("v_lshl_add_u32 v43, v41, 3, v43")
    g("s_lshl_b32 s4, s3, 1")
    g("v_xor_b32 v44, s4, v42")
    g("v_lshl_add_u32 v44, v44, 5, v43")
    g("s_add_u32 s4, s4, 1")
    g("v_xor_b32 v45, s4, v42")
    g("v_lshl_add_u32 v45, v45, 5, v43")
    g("v_lshlrev_b32 v48, 10, v41")
    g("v_lshl_add_u32 v48, v2, 4, v48")
    g(f"v_add_u32 v48, {K0_XN}, v48")
    g("s_waitcnt vmcnt(0) lgkmcnt(0)")
    g("s_barrier")
    g("v_mov_b32 v16, -1\nv_mov_b32 v17, -1\nv_mov_b32 v18, -1\nv_mov_b32 v19, -1")
    g("v_lshlrev_b32 v13, 4, v0")
    g("s_lshl_b32 s7, s2, 15")
    g(f"s_add_u32 s7, s7, {OPART_OFF}")
    g("s_cmp_lg_u32 s3, 0")
    g("s_cbranch_scc1 K0_noml")
    g("v_mov_b32 v20, 0\nv_mov_b32 v21, 0\nv_mov_b32 v22, 0\nv_mov_b32 v23, 0")
    g("s_mov_b64 exec, 0xffffffff")
    g("s_lshl_b32 s7, s2, 9")
    g(f"s_add_u32 s8, s7, {ML_OFF}")
    g("buffer_store_dwordx4 v[16:19], v13, s[64:67], s8 offen")
    g(f"s_add_u32 s8, s7, {QABS_OFF}")
    g("buffer_store_dwordx4 v[16:19], v13, s[64:67], s8 offen")
    g(f"s_add_u32 s8, s7, {FLC_OFF}")
    g("buffer_store_dwordx4 v[20:23], v13, s[64:67], s8 offen")
    g(f"s_add_u32 s8, s7, {FLY_OFF}")
    g("buffer_store_dwordx4 v[20:23], v13, s[64:67], s8 offen")
    g("s_mov_b64 exec, -1")
    g("K0_noml:")
    g("s_lshl_b32 s4, s69, 7")
    g("v_add_u32 v52, s4, v48")
    g("ds_read_b128 v[96:99], v52")
    g("ds_read_b128 v[100:103], v52 offset:64")
    for d in range(2):
        for s_ in range(2):
            for half in range(2):
                rr = 104 + (d * 2 + s_) * 4 + half * 2
                g(f"ds_read_b64_tr_b16 v[{rr}:{rr+1}], v{44+d} offset:{K0_WQ + s_*8192 + half*4096}")
    g("s_waitcnt lgkmcnt(0)")
    for d in range(2):
        g(f"v_mfma_f32_16x16x32_bf16 v[{80+4*d}:{83+4*d}], v[{104+8*d}:{107+8*d}], v[96:99], 0")
        g(f"v_mfma_f32_16x16x32_bf16 v[{80+4*d}:{83+4*d}], v[{108+8*d}:{111+8*d}], v[100:103], v[{80+4*d}:{83+4*d}]")
    g("v_lshlrev_b32 v51, 9, v41")
    g("v_lshl_add_u32 v51, v2, 4, v51")
    g("s_lshl_b32 s4, s68, 14")
    g("s_lshl_b32 s5, s69, 11")
    g("s_add_u32 s4, s4, s5")
    g("s_lshl_b32 s5, s3, 7")
    g("s_add_u32 s4, s4, s5")
    g(f"s_add_u32 s4, s4, {QP_OFF}")
    g("s_nop 7")
    g("v_cmp_gt_u32 vcc, 4, v3")
    g("s_and_saveexec_b64 s[10:11], vcc")
    for d in range(2):
        g(f"buffer_store_dwordx4 v[{80+4*d}:{83+4*d}], v51, s[64:67], s4 offen offset:{64*d}")
    g("s_mov_b64 exec, s[10:11]")
    g("s_cmp_ge_u32 s2, 224")
    g("s_cbranch_scc1 K0_pf" if os.environ.get("PFEND") else "s_cbranch_scc1 K0_done")
    g("s_lshl_b32 s4, s71, 6")
    g("v_add_u32 v52, s4, v48")
    g("ds_read_b128 v[96:99], v52")
    for mat in range(2):
        for d in range(2):
            for half in range(2):
                rr = 100 + (mat * 2 + d) * 4 + half * 2
                g(f"ds_read_b64_tr_b16 v[{rr}:{rr+1}], v{44+d} offset:{K0_FF + mat*8192 + half*4096}")
    g("s_waitcnt lgkmcnt(0)")
    for mat in range(2):
        for d in range(2):
            q = mat * 2 + d
            g(f"v_mfma_f32_16x16x32_bf16 v[{120+4*q}:{123+4*q}], v[{100+4*q}:{103+4*q}], v[96:99], 0")
    g("s_mov_b32 s4, 7168")
    g("v_mul_lo_u32 v54, v41, s4")
    g("v_lshl_add_u32 v54, v2, 4, v54")
    g("s_mul_i32 s4, s71, 57344")
    g("s_lshl_b32 s5, s70, 9")
    g("s_add_u32 s4, s4, s5")
    g("s_lshl_b32 s5, s3, 7")
    g("s_add_u32 s4, s4, s5")
    g(f"s_add_u32 s4, s4, {FFN_OFF}")
    g("s_nop 7")
    g("v_cmp_gt_u32 vcc, 4, v3")
    g("s_and_saveexec_b64 s[10:11], vcc")
    for mat in range(2):
        g(f"s_add_u32 s5, s4, {mat*28672}")
        for d in range(2):
            q = mat * 2 + d
            g(f"buffer_store_dwordx4 v[{120+4*q}:{123+4*q}], v54, s[64:67], s5 offen offset:{64*d}")
    g("s_mov_b64 exec, s[10:11]")
    if os.environ.get("PFEND"):
        g("K0_pf:")
        srd(g, 60, 18, 16 << 20)
        g("s_lshr_b32 s74, s2, 3")
        g("s_and_b32 s74, s74, 1")
        g("s_and_b32 s4, s2, 7")
        g("s_lshr_b32 s5, s2, 4")
        g("s_lshl_b32 s5, s5, 3")
        g("s_or_b32 s4, s4, s5")
        g("s_lshl_b32 s7, s4, 17")
        g("s_lshl_b32 s8, s74, 16")
        g("s_add_u32 s7, s7, s8")
        g("s_lshl_b32 s8, s3, 14")
        g("s_add_u32 s7, s7, s8")
        for n in range(int(os.environ["PFEND"])):
            g(f"buffer_load_dwordx4 v[{64+4*(n&3)}:{67+4*(n&3)}], v4, s[60:63], s7 offen nt")
            g("s_add_u32 s7, s7, 1024")
    if HST:
        g("K0_hst:")
        g(f"s_cmp_lg_u32 s2, {HWG}")
        g("s_cbranch_scc1 K0_done")
        g("s_cmp_lg_u32 s3, 0")
        g("s_cbranch_scc1 K0_done")
        g("s_waitcnt vmcnt(0)")
        g("s_memrealtime s[92:93]")
        srd(g, 60, 40, 256)
        g("s_waitcnt lgkmcnt(0)")
        g("s_mov_b64 exec, 1")
        g("v_mov_b32 v1, 0")
        g("v_mov_b32 v2, s90")
        g("v_mov_b32 v3, s92")
        g("buffer_store_dwordx2 v[2:3], v1, s[60:63], 0 offen")
    g("K0_done:")
    g("s_endpgm")


NREP = int(os.environ.get('NREPL', '32'))
L_CNT = XR + 1792
_lbl = [0]
def signal(g, idx):
    g("s_mov_b64 exec, 1")
    g(f"ds_add_u32 v250, v251 offset:{4*idx}")
    g("s_mov_b64 exec, -1")
def lwait(g, idx, cnt, sleep=0):
    _lbl[0] += 1
    L = f"LW{_lbl[0]}"
    g(f"{L}:")
    if sleep:
        g(f"s_sleep {sleep}")
    g(f"ds_read_b32 v252, v250 offset:{4*idx}")
    g("s_waitcnt lgkmcnt(0)")
    g("v_readfirstlane_b32 s79, v252")
    g(f"s_cmp_lt_u32 s79, {cnt}")
    g(f"s_cbranch_scc1 {L}")

def gen_kernel(g):
    name = "k1_kernel"
    g.raw(f".globl {name}")
    g.raw(".p2align 8")
    g.raw(f".type {name},@function")
    g.raw(f"{name}:")
    g("s_cmp_ge_u32 s2, 256")
    g("s_cbranch_scc1 L_done")
    stamp(g, 0)
    if DEBUG:
        g("s_memtime s[86:87]")
    g("s_load_dwordx16 s[16:31], s[0:1], 0")
    g("s_load_dwordx8 s[32:39], s[0:1], 64")
    g("s_load_dwordx4 s[40:43], s[0:1], 96")
    g("v_lshrrev_b32 v1, 6, v0")
    g("v_and_b32 v0, 0xff, v0")
    g("v_readfirstlane_b32 s77, v1")
    g("v_and_b32 v1, 63, v0")
    g("v_lshrrev_b32 v2, 4, v1")
    g("v_and_b32 v3, 15, v1")
    g("v_lshrrev_b32 v40, 2, v3")
    g("v_and_b32 v41, 3, v3")
    g("v_lshlrev_b32 v4, 4, v1")
    g(f"v_mov_b32 v250, {L_CNT}")
    g("v_mov_b32 v251, 1")
    g("v_lshlrev_b32 v252, 2, v1")
    g(f"v_add_u32 v252, {L_CNT}, v252")
    g("v_mov_b32 v253, 0")
    g("ds_write_b32 v252, v253")
    g("s_and_b32 s3, s77, 3")
    g("s_lshr_b32 s77, s77, 2")
    g("s_and_b32 s68, s2, 7")
    g("s_lshl_b32 s68, s68, 2")
    g("s_lshr_b32 s4, s2, 3")
    g("s_and_b32 s4, s4, 3")
    g("s_add_u32 s68, s68, s4")
    g("s_lshr_b32 s69, s2, 5")
    g("s_lshr_b32 s74, s2, 3")
    g("s_and_b32 s74, s74, 1")
    g("s_and_b32 s4, s2, 7")
    g("s_lshr_b32 s5, s2, 4")
    g("s_lshl_b32 s5, s5, 3")
    g("s_or_b32 s4, s4, s5")
    g("s_lshr_b32 s75, s4, 5")
    g("s_and_b32 s76, s4, 31")
    g("s_waitcnt lgkmcnt(0)")
    g("s_barrier")
    srd(g, 64, 42, WS_SIZE)
    g("s_cmp_eq_u32 s77, 0")
    g("s_cbranch_scc0 L_loader")
    gen_compute(g)
    g("s_branch L_done")
    g("L_loader:")
    gen_loader(g)
    g("L_done:")
    g("s_endpgm")

def gen_loader(g):
    srd(g, 44, 18, 16 << 20)
    g("s_lshl_b32 s7, s75, 22")
    g("s_lshl_b32 s8, s76, 17")
    g("s_add_u32 s7, s7, s8")
    g("s_lshl_b32 s8, s3, 15")
    g("s_add_u32 s7, s7, s8")
    g(f"s_mul_i32 s8, s3, {32*RS}")
    for n in range(32):
        g("s_mov_b32 m0, s8")
        g(f"s_add_u32 s8, s8, {RS}")
        g("buffer_load_dwordx4 v4, s[44:47], s7 offen nt lds")
        g("s_add_u32 s7, s7, 1024")
    stamp(g, 4)
    g("s_and_b32 s5, s3, 1")
    g("s_lshl_b32 s5, s5, 3")
    g("v_lshlrev_b32 v5, 1, v2")
    g("v_add_u32 v5, s5, v5")
    g("v_xor_b32 v5, v5, v3")
    g("v_lshlrev_b32 v5, 4, v5")
    g("v_lshl_add_u32 v6, v2, 13, v5")
    srd(g, 48, 26, 32 * 131072)
    g("s_lshl_b32 s6, s68, 17")
    g("s_lshl_b32 s7, s3, 15")
    g("s_add_u32 s6, s6, s7")
    NW1 = int(os.environ.get("NW1", "0"))
    def wo_loads(lo, hi, tag):
        for jj in range(8):
            g(f"s_cmp_eq_u32 s69, {jj}")
            g(f"s_cbranch_scc1 LL_wo{tag}{jj}")
        for jj in range(8):
            g(f"LL_wo{tag}{jj}:")
            for n in range(lo, hi):
                r = (n + 4 * jj) & 31
                g(f"s_add_u32 s7, s6, {r*1024}")
                g(f"buffer_load_dwordx4 v[{64+4*r}:{67+4*r}], v4, s[48:51], s7 offen nt")
            g(f"s_branch LL_wod{tag}")
        g(f"LL_wod{tag}:")
    if NW1:
        wo_loads(0, NW1, "a")
    g(f"s_waitcnt vmcnt({NW1})")
    signal(g, 1)
    stamp(g, 5)
    if os.environ.get("WODLY"):
        lwait(g, int(os.environ["WODLY"]), 4, 2)
    wo_loads(NW1, 32, "b")
    srd(g, 44, 24, 512 * 8192)
    g("s_lshl_b32 s6, s68, 8")
    g("s_lshl_b32 s7, s69, 19")
    g("s_add_u32 s6, s6, s7")
    g("s_lshl_b32 s7, s3, 15")
    g("s_add_u32 s6, s6, s7")
    for n in range(4):
        g(f"buffer_load_dwordx4 v[{192+4*n}:{195+4*n}], v6, s[44:47], s6 offen nt")
        g("s_add_u32 s6, s6, 131072")
    stamp(g, 6)
    g("s_waitcnt vmcnt(0)")
    stamp(g, 7)
    lwait(g, 3, 4, 2)
    g("s_lshl_b32 s8, s3, 10")
    g(f"s_add_u32 s8, s8, {L_WUV}")
    g("v_add_u32 v7, s8, v4")
    for n in range(4):
        g(f"ds_write_b128 v7, v[{192+4*n}:{195+4*n}] offset:{n*4096}")
    lwait(g, 11, 4, 2)
    g(f"s_mul_i32 s8, s3, {32*RS}")
    g("v_add_u32 v7, s8, v4")
    for n in range(32):
        g(f"ds_write_b128 v7, v[{64+4*n}:{67+4*n}] offset:{n*RS}")
    g("s_waitcnt lgkmcnt(0)")
    signal(g, 6)
    stamp(g, 8)
    if DEBUG:
        g("s_cmp_lg_u32 s3, 0")
        g("s_cbranch_scc1 L_done")
    stamp_flush(g, 128)

def gen_compute(g):
    if os.environ.get("PRIO"):
        g("s_setprio 3")
    srd(g, 48, 22, 512 * 8192)
    srd(g, 52, 16, 4096)
    g("v_lshlrev_b32 v5, 3, v1")
    g("s_lshl_b32 s4, s68, 14")
    g("s_lshl_b32 s5, s3, 9")
    g("s_add_u32 s4, s4, s5")
    g(f"s_add_u32 s4, s4, {QP_OFF}")
    for p in range(8):
        g(f"buffer_load_dwordx2 v[{96+2*p}:{97+2*p}], v5, s[64:67], s4 offen offset:{2048*p if p < 2 else 0}" if p < 2 else f"buffer_load_dwordx2 v[{96+2*p}:{97+2*p}], v5, s[64:67], s5 offen offset:{2048*(p&1)}")
        if p & 1:
            g(f"s_add_u32 s5, s4, {2048*(p+1)}")
    g("s_lshl_b32 s6, s68, 8")
    g("s_lshl_b32 s7, s69, 6")
    g("s_lshl_b32 s8, s3, 4")
    g("s_add_u32 s7, s7, s8")
    g("v_add_u32 v7, s7, v3")
    g("v_lshlrev_b32 v7, 13, v7")
    g("v_lshl_add_u32 v7, v2, 4, v7")
    g("v_add_u32 v7, s6, v7")
    for ks in range(4):
        g(f"buffer_load_dwordx4 v[{64+4*ks}:{67+4*ks}], v7, s[48:51], 0 offen offset:{64*ks} nt")
    srd(g, 56, 36, 1792 * 1024)
    g("s_lshl_b32 s4, s2, 3")
    g("s_lshl_b32 s5, s3, 1")
    g("s_add_u32 s4, s4, s5")
    g("s_lshl_b32 s4, s4, 10")
    g("s_lshl_b32 s5, s3, 11")
    g(f"s_add_u32 s5, s5, {L_WD}")
    for i in range(2):
        g("s_mov_b32 m0, s5")
        g("s_add_u32 s5, s5, 1024")
        g("buffer_load_dwordx4 v4, s[56:59], s4 offen nt lds")
        g("s_add_u32 s4, s4, 1024")
    g("v_and_b32 v42, 1, v2")
    g("v_lshl_add_u32 v42, v42, 2, v40")
    g("v_lshl_add_u32 v43, v2, 2, v40")
    g("v_lshlrev_b32 v43, 8, v43")
    g("v_lshl_add_u32 v43, v41, 3, v43")
    g("s_lshl_b32 s4, s3, 8")
    g(f"s_add_u32 s4, s4, {L_QX}")
    g("v_lshlrev_b32 v49, 2, v1")
    g("v_add_u32 v49, s4, v49")
    g("v_lshlrev_b32 v50, 8, v41")
    g("v_lshl_add_u32 v50, v2, 4, v50")
    g(f"v_add_u32 v50, {L_QX}, v50")
    g("s_waitcnt vmcnt(6)")
    stamp(g, 1)
    for p in range(1, 8):
        g(f"v_add_f32 v96, v96, v{96+2*p}")
        g(f"v_add_f32 v97, v97, v{97+2*p}")
    g("v_cvt_pk_bf16_f32 v88, v96, v97")
    g("ds_write_b32 v49, v88")
    g("s_waitcnt lgkmcnt(0)")
    signal(g, 0)
    lwait(g, 0, 4)
    for ks in range(4):
        g(f"ds_read_b128 v[{96+4*ks}:{99+4*ks}], v50 offset:{64*ks}")
    g("s_waitcnt vmcnt(0) lgkmcnt(0)")
    g("v_mfma_f32_16x16x32_bf16 v[80:83], v[64:67], v[96:99], 0")
    for ks in range(1, 4):
        g(f"v_mfma_f32_16x16x32_bf16 v[80:83], v[{64+4*ks}:{67+4*ks}], v[{96+4*ks}:{99+4*ks}], v[80:83]")
    g("v_lshlrev_b32 v51, 15, v41")
    g("v_lshl_add_u32 v51, v2, 3, v51")
    g("s_lshl_b32 s4, s68, 10")
    g("s_lshl_b32 s5, s69, 7")
    g("s_add_u32 s4, s4, s5")
    g("s_lshl_b32 s5, s3, 5")
    g("s_add_u32 s4, s4, s5")
    g(f"s_add_u32 s4, s4, {QABS_OFF}")
    g("s_nop 7")
    g("v_cvt_pk_bf16_f32 v88, v80, v81")
    g("v_cvt_pk_bf16_f32 v89, v82, v83")
    g("v_cmp_gt_u32 vcc, 4, v3")
    g("s_and_saveexec_b64 s[10:11], vcc")
    g("buffer_store_dwordx2 v[88:89], v51, s[64:67], s4 offen sc1")
    g("s_mov_b64 exec, s[10:11]")
    stamp(g, 2)
    g("s_cmp_ge_u32 s2, 224")
    g("s_cbranch_scc1 LC_nf1")
    g("v_and_b32 v7, 7, v1")
    g("v_lshlrev_b32 v7, 2, v7")
    g("v_lshrrev_b32 v30, 3, v1")
    g("s_mov_b32 s4, 7168")
    g("v_mul_lo_u32 v30, v30, s4")
    g("v_add_u32 v7, v7, v30")
    g("s_mul_i32 s4, s3, 229376")
    g("s_lshl_b32 s5, s2, 5")
    g("s_add_u32 s4, s4, s5")
    g(f"s_add_u32 s4, s4, {FFN_OFF}")
    for i in range(4):
        g(f"buffer_load_dword v{232+i}, v7, s[64:67], s4 offen")
        g("s_add_u32 s4, s4, 57344")
    g("LC_nf1:")
    srd(g, 48, 30, 1024)
    g("s_lshr_b32 s4, s2, 6")
    g("s_lshl_b32 s4, s4, 10")
    g("buffer_load_dwordx4 v[236:239], v4, s[64:67], s4 offen")
    g("buffer_load_dwordx4 v[240:243], v4, s[48:51], 0 offen")
    g("v_and_b32 v246, 7, v1")
    g("v_lshlrev_b32 v246, 1, v246")
    g("s_and_b32 s5, s2, 63")
    g("s_lshl_b32 s5, s5, 4")
    g("s_add_u32 s78, s5, s4")
    g("buffer_load_ushort v244, v246, s[52:55], s78 offen")
    g("buffer_load_ushort v245, v246, s[64:67], s78 offen")
    g("s_waitcnt vmcnt(4)")
    g("s_cmp_ge_u32 s2, 224")
    g("s_cbranch_scc1 LC_nf2")
    g("v_add_f32 v232, v232, v233")
    g("v_add_f32 v234, v234, v235")
    g("v_add_f32 v232, v232, v234")
    g("v_lshlrev_b32 v22, 2, v0")
    g(f"v_add_u32 v22, {L_HB}, v22")
    g("ds_write_b32 v22, v232")
    g("LC_nf2:")
    g("s_waitcnt lgkmcnt(0)")
    signal(g, 7)
    lwait(g, 7, 4)
    g("v_lshlrev_b32 v36, 11, v41")
    g("v_lshl_add_u32 v36, v2, 4, v36")
    g("s_cmp_ge_u32 s2, 224")
    g("s_cbranch_scc1 LC_nf3")
    g("s_lshl_b32 s7, s2, 13")
    g("s_lshl_b32 s5, s3, 9")
    g("s_add_u32 s7, s7, s5")
    g(f"s_add_u32 s7, s7, {YPART_OFF}")
    g("v_and_b32 v22, 31, v1")
    g("v_lshlrev_b32 v22, 2, v22")
    g(f"v_add_u32 v22, {L_HB}, v22")
    for w in range(4):
        g(f"ds_read_b32 v{24+w}, v22 offset:{w*256}")
        g(f"ds_read_b32 v{28+w}, v22 offset:{w*256+128}")
    g("v_lshlrev_b32 v23, 10, v42")
    g("v_lshl_add_u32 v23, v41, 3, v23")
    g("s_lshl_b32 s4, s3, 8")
    g(f"s_add_u32 s4, s4, {L_WD}")
    g("v_add_u32 v23, s4, v23")
    for mt in range(8):
        g(f"ds_read_b64_tr_b16 v[{128+4*mt}:{129+4*mt}], v23 offset:{mt*32}")
    g("s_waitcnt lgkmcnt(8)")
    g("v_add_f32 v24, v24, v25\nv_add_f32 v26, v26, v27\nv_add_f32 v24, v24, v26")
    g("v_add_f32 v28, v28, v29\nv_add_f32 v30, v30, v31\nv_add_f32 v28, v28, v30")
    rb(g, 24, 25)
    rb(g, 28, 25)
    silu_inplace(g, 24, 25)
    rb(g, 24, 25)
    g("v_mul_f32 v24, v24, v28")
    g("v_cvt_pk_bf16_f32 v24, v24, v24")
    g("v_and_b32 v22, 31, v1")
    g("v_lshlrev_b32 v22, 1, v22")
    g("s_lshl_b32 s4, s3, 6")
    g(f"s_add_u32 s4, s4, {L_HF}")
    g("v_add_u32 v22, s4, v22")
    g("ds_write_b16 v22, v24")
    g("v_lshlrev_b32 v22, 4, v41")
    g("v_and_b32 v23, 1, v2")
    g("v_lshl_add_u32 v22, v23, 3, v22")
    g("v_add_u32 v22, s4, v22")
    g("s_waitcnt lgkmcnt(0)")
    g("ds_read_b64 v[32:33], v22")
    g("v_mov_b32 v34, 0\nv_mov_b32 v35, 0")
    for mt in range(8):
        g(f"v_mov_b32 v{130+4*mt}, v{128+4*mt}")
        g(f"v_mov_b32 v{131+4*mt}, v{129+4*mt}")
    g("v_cmp_gt_u32 vcc, 2, v2")
    g("s_waitcnt lgkmcnt(0)")
    g("v_cndmask_b32 v32, 0, v32, vcc")
    g("v_cndmask_b32 v33, 0, v33, vcc")
    g("s_nop 1")
    for mt in range(8):
        g(f"v_mfma_f32_16x16x32_bf16 v[{160+4*mt}:{163+4*mt}], v[{128+4*mt}:{131+4*mt}], v[32:35], 0")
    g("s_nop 7")
    g("v_cmp_gt_u32 vcc, 4, v3")
    g("s_and_saveexec_b64 s[10:11], vcc")
    for mt in range(8):
        g(f"buffer_store_dwordx4 v[{160+4*mt}:{163+4*mt}], v36, s[64:67], s7 offen offset:{mt*64} sc1")
    g("s_mov_b64 exec, s[10:11]")
    g("LC_nf3:")
    signal(g, 17)
    stamp(g, 19)
    g("s_lshl_b32 s6, s3, 2")
    for i in range(4):
        g(f"s_add_u32 s7, s6, {i}")
        g(f"v_xor_b32 v{24+i}, s7, v1")
        g(f"v_lshlrev_b32 v{24+i}, 4, v{24+i}")
        g("s_lshl_b32 s7, s7, 10")
        g(f"s_add_u32 s7, s7, {L_QA}")
        g(f"v_add_u32 v{24+i}, s7, v{24+i}")
    g("s_lshl_b32 s5, s75, 5")
    g("s_lshl_b32 s6, s74, 4")
    g("s_add_u32 s5, s5, s6")
    g("s_lshl_b32 s6, s3, 2")
    g("s_add_u32 s5, s5, s6")
    g("s_lshl_b32 s5, s5, 10")
    g(f"s_add_u32 s5, s5, {QABS_OFF}")
    g("s_mov_b32 s82, 0")
    if os.environ.get("LATEPOLL"):
        lwait(g, 1, 4, 2)
    else:
        pass
    g("LC_pollA:")
    g("s_sleep 8" if not os.environ.get("LATEPOLL") else "s_sleep 1")
    for i in range(4):
        g(f"buffer_load_dwordx4 v[{8+4*i}:{11+4*i}], v4, s[64:67], s5 offen offset:{1024*i} sc1")
    g("s_waitcnt vmcnt(0)")
    g("v_max3_u32 v28, v8, v9, v10")
    for i in range(6):
        g(f"v_max3_u32 v28, v28, v{11+2*i}, v{12+2*i}")
    g("v_max_u32 v28, v28, v23")
    g("v_cmp_eq_u32 vcc, -1, v28")
    g("s_add_u32 s82, s82, 1")
    g(f"s_cmp_gt_u32 s82, {SPIN_MAX}")
    g("s_cbranch_scc1 LC_pollAd")
    g("s_cbranch_vccnz LC_pollA")
    g("LC_pollAd:")
    stamp(g, 3)
    g("s_waitcnt vmcnt(0)")
    g("v_lshlrev_b32 v29, 12, v1")
    g("v_mov_b32 v30, 1")
    g("s_lshl_b32 s4, s2, 2")
    g("s_lshl_b32 s5, s3, 10")
    g("s_add_u32 s4, s4, s5")
    g(f"s_add_u32 s4, s4, {FLY_OFF}")
    g(f"s_mov_b64 exec, 0x{(1<<NREP)-1:x}")
    g("buffer_store_dword v30, v29, s[64:67], s4 offen sc1")
    g("s_mov_b64 exec, -1")
    lwait(g, 17, 4)
    for i in range(4):
        g(f"ds_write_b128 v{24+i}, v[{8+4*i}:{11+4*i}]")
    for i in range(4):
        g(f"v_add_u32 v6, {4*i}, v2")
        g("v_xor_b32 v6, v6, v3")
        g("v_lshlrev_b32 v6, 4, v6")
        g(f"v_lshl_add_u32 v{8+i}, v3, 10, v6")
        g(f"v_add_u32 v{8+i}, {L_QA}, v{8+i}")
    g("s_lshl_b32 s4, s3, 5")
    g("v_add_u32 v12, s4, v3")
    g(f"s_mov_b32 s4, {RS}")
    g("v_mul_lo_u32 v12, v12, s4")
    g("v_lshl_add_u32 v12, v2, 4, v12")
    for i in range(8):
        g(f"v_mov_b32 v{48+i}, 0")
    g("s_waitcnt lgkmcnt(0)")
    signal(g, 2)
    lwait(g, 2, 4)
    for s_ in range(16):
        g(f"ds_read_b128 v[{64+4*s_}:{67+4*s_}], v{8+(s_&3)} offset:{(s_>>2)*256}")
    lwait(g, 1, 4, 1)
    stamp(g, 4)
    def sissue(grp):
        e = grp & 1
        for kk in range(4):
            s_ = grp * 4 + kk
            for T in range(2):
                rr = 128 + e * 32 + (kk * 2 + T) * 4
                g(f"ds_read_b128 v[{rr}:{rr+3}], v12 offset:{T*16*RS + s_*64}")
    def scompute(grp):
        e = grp & 1
        for kk in range(4):
            s_ = grp * 4 + kk
            for T in range(2):
                rr = 128 + e * 32 + (kk * 2 + T) * 4
                g(f"v_mfma_f32_16x16x32_bf16 v[{48+4*T}:{51+4*T}], v[{rr}:{rr+3}], v[{64+4*s_}:{67+4*s_}], v[{48+4*T}:{51+4*T}]")
    sissue(0)
    for grp in range(4):
        if grp < 3:
            sissue(grp + 1)
            g("s_waitcnt lgkmcnt(8)")
        else:
            g("s_waitcnt lgkmcnt(0)")
        scompute(grp)
    g("v_lshlrev_b32 v13, 6, v3")
    g("v_lshl_add_u32 v14, v2, 2, v13")
    g("s_lshl_b32 s4, s3, 4")
    g("v_add_u32 v14, s4, v14")
    g(f"v_add_u32 v15, {L_MX}, v14")
    g(f"v_add_u32 v16, {L_MX}, v13")
    g("s_nop 3")
    for i in range(8):
        rb(g, 48 + i, 56)
        g(f"v_mul_f32 v{48+i}, 0x3db504f3, v{48+i}")
        rb(g, 48 + i, 56)
    g("v_max3_f32 v56, v48, v49, v50")
    g("v_max3_f32 v56, v56, v51, v52")
    g("v_max3_f32 v56, v56, v53, v54")
    g("v_max_f32 v56, v56, v55")
    g("ds_write_b32 v15, v56")
    g("s_waitcnt lgkmcnt(0)")
    signal(g, 3)
    lwait(g, 3, 4)
    for i in range(4):
        g(f"ds_read_b128 v[{128+4*i}:{131+4*i}], v16 offset:{16*i}")
    g("s_waitcnt lgkmcnt(0)")
    g("v_max3_f32 v57, v128, v129, v130")
    for i in range(6):
        g(f"v_max3_f32 v57, v57, v{131+2*i}, v{132+2*i}")
    g("v_max_f32 v57, v57, v143")
    for i in range(8):
        g(f"v_sub_f32 v{48+i}, v{48+i}, v57")
        g(f"v_mul_f32 v{48+i}, 0x3fb8aa3b, v{48+i}")
        g(f"v_exp_f32 v{48+i}, v{48+i}")
    g("s_nop 0")
    g("v_add_f32 v58, v48, v49")
    for i in range(2, 8):
        g(f"v_add_f32 v58, v58, v{48+i}")
    for i in range(4):
        g(f"v_cvt_pk_bf16_f32 v{60+i}, v{48+2*i}, v{49+2*i}")
    g(f"v_add_u32 v15, {L_LS}, v14")
    g("ds_write_b32 v15, v58")
    g("s_lshl_b32 s4, s3, 10")
    g(f"s_add_u32 s4, s4, {L_P}")
    g("v_add_u32 v17, s4, v4")
    g("ds_write_b128 v17, v[60:63]")
    g(f"v_add_u32 v17, {L_P}, v4")
    g("v_lshl_add_u32 v18, v2, 2, v40")
    g(f"s_mov_b32 s4, {RS}")
    g("v_mul_lo_u32 v18, v18, s4")
    g("s_lshl_b32 s4, s3, 8")
    g("v_add_u32 v18, s4, v18")
    g("v_lshl_add_u32 v20, v41, 4, v18")
    g(f"v_add_u32 v21, {64*RS}, v20")
    g("v_lshl_add_u32 v18, v41, 3, v18")
    g(f"v_add_u32 v19, {64*RS}, v18")
    g("s_waitcnt lgkmcnt(0)")
    signal(g, 4)
    lwait(g, 4, 4)
    stamp(g, 5)
    for u in range(4):
        g(f"ds_read_b128 v[{64+4*u}:{67+4*u}], v17 offset:{u*1024}")
    g(f"v_add_u32 v16, {L_LS}, v13")
    for i in range(4):
        g(f"ds_read_b128 v[{80+4*i}:{83+4*i}], v16 offset:{16*i}")
    def tr_pipeline(bfrag, accbase, tmpbase, areg, coloff):
        def pissue(ct):
            e = ct & 1
            for u in range(4):
                for half in range(2):
                    rr = tmpbase + e * 16 + u * 4 + half * 2
                    off = (32 * (u & 1) + 16 * half) * RS + coloff(ct)
                    g(f"ds_read_b64_tr_b16 v[{rr}:{rr+1}], v{areg + (u>>1)} offset:{off}")
        def pcompute(ct):
            e = ct & 1
            for u in range(4):
                rr = tmpbase + e * 16 + u * 4
                c = "0" if u == 0 else f"v[{accbase+4*ct}:{accbase+3+4*ct}]"
                g(f"v_mfma_f32_16x16x32_bf16 v[{accbase+4*ct}:{accbase+3+4*ct}], v[{rr}:{rr+3}], v[{bfrag+4*u}:{bfrag+3+4*u}], {c}")
        pissue(0)
        for ct in range(8):
            if ct < 7:
                pissue(ct + 1)
                g("s_waitcnt lgkmcnt(8)")
            else:
                g("s_waitcnt lgkmcnt(0)")
            pcompute(ct)
    tr_pipeline(64, 192, 128, 20, lambda ct: (ct >> 1) * 64 + (ct & 1) * 8)
    signal(g, 11)
    g("v_add_f32 v59, v80, v81")
    for i in range(2, 16):
        g(f"v_add_f32 v59, v59, v{80+i}")
    g("v_mov_b32 v58, v57")
    g("v_lshlrev_b32 v22, 17, v3")
    g("v_lshl_add_u32 v22, v2, 4, v22")
    g("s_lshl_b32 s4, s74, 21")
    g("s_lshl_b32 s5, s3, 15")
    g("s_add_u32 s4, s4, s5")
    g("s_lshl_b32 s5, s75, 12")
    g("s_add_u32 s4, s4, s5")
    g("s_lshl_b32 s5, s76, 7")
    g("s_add_u32 s4, s4, s5")
    g(f"s_add_u32 s4, s4, {OPART_OFF}")
    g("s_add_u32 s5, s4, 16384")
    for p in range(4):
        for q in range(4):
            g(f"v_cvt_pk_bf16_f32 v{128+4*p+q}, v{192+8*p+2*q}, v{193+8*p+2*q}")
        g(f"buffer_store_dwordx4 v[{128+4*p}:{131+4*p}], v22, s[64:67], s{4+(p>>1)} offen offset:{(p&1)*64} sc1")
    stamp(g, 17)
    g("v_lshlrev_b32 v21, 12, v3")
    g("s_lshl_b32 s4, s74, 16")
    g("s_lshl_b32 s5, s3, 10")
    g("s_add_u32 s4, s4, s5")
    g("s_lshl_b32 s5, s75, 8")
    g("s_add_u32 s4, s4, s5")
    g("s_lshl_b32 s5, s76, 3")
    g("s_add_u32 s4, s4, s5")
    g(f"s_add_u32 s4, s4, {ML_OFF}")
    g("s_waitcnt vmcnt(0)")
    g("s_mov_b64 exec, 0xffff")
    g("buffer_store_dwordx2 v[58:59], v21, s[64:67], s4 offen sc1")
    g("s_mov_b64 exec, -1")
    stamp(g, 6)
    g("s_lshr_b32 s80, s2, 6")
    g("s_and_b32 s81, s2, 63")
    g("v_and_b32 v230, 7, v1")
    g("v_lshlrev_b32 v230, 2, v230")
    g("v_lshrrev_b32 v5, 3, v1")
    g("v_lshl_add_u32 v230, v5, 13, v230")
    g("s_lshl_b32 s4, s3, 19")
    g("s_lshl_b32 s5, s80, 11")
    g("s_add_u32 s4, s4, s5")
    g("s_lshl_b32 s5, s81, 5")
    g("s_add_u32 s83, s4, s5")
    g(f"s_and_b32 s4, s2, {NREP-1}")
    g("s_lshl_b32 s4, s4, 12")
    g("s_lshr_b32 s5, s81, 4")
    g("s_lshl_b32 s5, s5, 10")
    g("s_add_u32 s4, s4, s5")
    g("s_lshl_b32 s5, s3, 8")
    g("s_add_u32 s15, s4, s5")
    g(f"s_add_u32 s4, s15, {FLY_OFF}")
    g("v_lshlrev_b32 v231, 2, v1")
    g("s_mov_b32 s82, 0")
    g("LC_pollY:")
    g("buffer_load_dword v6, v231, s[64:67], s4 offen sc1")
    g("s_waitcnt vmcnt(0)")
    g("v_cmp_ne_u32 vcc, 1, v6")
    g("s_add_u32 s82, s82, 1")
    g(f"s_cmp_gt_u32 s82, {SPIN_MAX}")
    g("s_cbranch_scc1 LC_pollYd")
    g("s_cbranch_vccnz LC_pollY")
    g("LC_pollYd:")
    g(f"s_add_u32 s6, s83, {YPART_OFF}")
    for i in range(4, 8):
        g(f"v_mov_b32 v{24+i}, 0")
    for i in range(8):
        if i == 4:
            g("s_cmp_eq_u32 s3, 3")
            g("s_cbranch_scc1 LC_y8")
        g(f"buffer_load_dword v{24+i}, v230, s[64:67], s6 offen sc1")
        g("s_add_u32 s6, s6, 65536")
    g("LC_y8:")
    g("s_waitcnt vmcnt(0)")
    for i in range(1, 8):
        g(f"v_add_f32 v24, v24, v{24+i}")
    g("v_mov_b32 v229, v24")
    stamp(g, 18)
    g("v_lshlrev_b32 v36, 11, v41")
    g("v_lshl_add_u32 v36, v2, 4, v36")
    stamp(g, 19)
    g("v_and_b32 v5, 31, v1")
    g("v_lshlrev_b32 v5, 3, v5")
    g("s_lshl_b32 s80, s68, 12")
    g("s_lshr_b32 s5, s69, 1")
    g("s_lshl_b32 s5, s5, 10")
    g("s_add_u32 s80, s80, s5")
    g("s_lshl_b32 s5, s3, 8")
    g("s_add_u32 s80, s80, s5")
    g(f"s_add_u32 s80, s80, {ML_OFF}")
    g("v_lshlrev_b32 v6, 1, v1")
    g("s_lshl_b32 s81, s68, 17")
    g("s_lshl_b32 s5, s69, 14")
    g("s_add_u32 s81, s81, s5")
    g("s_lshl_b32 s5, s3, 12")
    g("s_add_u32 s81, s81, s5")
    g(f"s_add_u32 s81, s81, {OPART_OFF}")
    g("s_mov_b32 s82, 0")
    g("LC_pollml:")
    if not os.environ.get("NOSLEEP"):
        g("s_sleep 2")
    g("buffer_load_dwordx2 v[8:9], v5, s[64:67], s80 offen sc1")
    g("s_waitcnt vmcnt(0)")
    g("v_add_f32 v10, v8, v9")
    g("v_cmp_u_f32 vcc, v10, v10")
    g("s_add_u32 s82, s82, 1")
    g(f"s_cmp_gt_u32 s82, {SPIN_MAX}")
    g("s_cbranch_scc1 LC_pollO")
    g("s_cbranch_vccnz LC_pollml")
    g("LC_pollO:")
    stamp(g, 14)
    for kc in range(32):
        g(f"buffer_load_ushort v{64+kc}, v6, s[64:67], s81 offen offset:{kc*128} sc1")
    g("v_mov_b32 v17, v8")
    dpp_reduce(g, "v_max_f32", 17, 72)
    g("v_subrev_f32 v17, s72, v8")
    g("v_mul_f32 v17, 0x3fb8aa3b, v17")
    g("v_exp_f32 v17, v17")
    g("s_nop 0")
    g("v_mul_f32 v10, v17, v9")
    dpp_reduce(g, "v_add_f32", 10, 73)
    g("v_mov_b32 v20, s73")
    g("v_mul_f32 v20, 0.5, v20")
    g("v_rcp_f32 v20, v20")
    g("v_and_b32 v21, 0x23, v1")
    g("v_bfe_u32 v22, v1, 2, 2")
    g("v_lshl_add_u32 v21, v22, 3, v21")
    g("v_bfe_u32 v22, v1, 4, 1")
    g("v_lshl_add_u32 v21, v22, 2, v21")
    g("v_lshlrev_b32 v21, 1, v21")
    g("s_lshl_b32 s12, s3, 7")
    g(f"s_add_u32 s12, s12, {L_OL}")
    g("v_add_u32 v21, s12, v21")
    g("v_mov_b32 v11, 0")
    for q in range(4):
        for i in range(8):
            g(f"v_readlane_b32 s{4+i}, v17, {8*q+i}")
        g(f"s_waitcnt vmcnt({24-8*q})")
        for i in range(8):
            kc = 8 * q + i
            g(f"v_lshlrev_b32 v{64+kc}, 16, v{64+kc}")
            g(f"v_fmac_f32 v11, s{4+i}, v{64+kc}")
    stamp(g, 15)
    g("v_mul_f32 v11, v11, v20")
    g("v_cvt_pk_bf16_f32 v11, v11, v11")
    g("ds_write_b16 v21, v11")
    g("s_waitcnt lgkmcnt(0)")
    signal(g, 8)
    lwait(g, 6, 4, 1)
    g(f"v_add_u32 v24, {L_WUV}, v43")
    for dt in range(8):
        g(f"v_xor_b32 v25, {dt}, v42")
        g("v_lshl_add_u32 v25, v25, 5, v24")
        for s_ in range(2):
            for half in range(2):
                rr = 128 + dt * 8 + s_ * 4 + half * 2
                g(f"ds_read_b64_tr_b16 v[{rr}:{rr+1}], v25 offset:{s_*8192 + half*4096}")
        if dt % 2 == 1:
            g("s_waitcnt lgkmcnt(4)")
    g("v_lshlrev_b32 v22, 7, v41")
    g("v_lshl_add_u32 v22, v2, 4, v22")
    g(f"v_add_u32 v22, {L_OL}, v22")
    lwait(g, 8, 4)
    stamp(g, 7)
    g("ds_read_b128 v[44:47], v22")
    g("ds_read_b128 v[48:51], v22 offset:64")
    g("s_waitcnt lgkmcnt(0)")
    for dt in range(8):
        g(f"v_mfma_f32_16x16x32_bf16 v[{96+4*dt}:{99+4*dt}], v[{128+8*dt}:{131+8*dt}], v[44:47], 0")
        g(f"v_mfma_f32_16x16x32_bf16 v[{96+4*dt}:{99+4*dt}], v[{132+8*dt}:{135+8*dt}], v[48:51], v[{96+4*dt}:{99+4*dt}]")
    g("s_nop 7")
    for dt in range(8):
        g(f"v_cvt_pk_bf16_f32 v{44+2*dt}, v{96+4*dt}, v{97+4*dt}")
        g(f"v_cvt_pk_bf16_f32 v{45+2*dt}, v{98+4*dt}, v{99+4*dt}")
    tr_pipeline(44, 192, 64, 18, lambda ct: ct * 32)
    g("s_lshl_b32 s4, s2, 13")
    g("s_lshl_b32 s5, s3, 9")
    g("s_add_u32 s4, s4, s5")
    g(f"s_add_u32 s6, s4, {SPART_OFF}")
    g("s_nop 7")
    g("v_cmp_gt_u32 vcc, 4, v3")
    g("s_and_saveexec_b64 s[10:11], vcc")
    for mt in range(8):
        g(f"buffer_store_dwordx4 v[{192+4*mt}:{195+4*mt}], v36, s[64:67], s6 offen offset:{mt*64} sc1")
    g("s_mov_b64 exec, s[10:11]")
    stamp(g, 8)
    g("v_mov_b32 v8, 0")
    for i in range(4):
        g(f"v_lshlrev_b32 v9, 16, v{236+i}")
        g(f"v_lshlrev_b32 v10, 16, v{240+i}")
        g("v_fmac_f32 v8, v9, v10")
        g(f"v_and_b32 v9, 0xffff0000, v{236+i}")
        g(f"v_and_b32 v10, 0xffff0000, v{240+i}")
        g("v_fmac_f32 v8, v9, v10")
    dpp_reduce(g, "v_add_f32", 8, 72)
    g("v_mov_b32 v13, s72")
    rb(g, 13, 12)
    g("v_mul_f32 v13, 0xbfb8aa3b, v13")
    g("v_exp_f32 v13, v13")
    g("s_nop 0")
    g("v_add_f32 v13, 1.0, v13")
    g("v_rcp_f32 v13, v13")
    g("s_nop 0")
    rb(g, 13, 12)
    g("v_lshlrev_b32 v245, 16, v245")
    g("v_lshlrev_b32 v244, 16, v244")
    g("s_waitcnt vmcnt(0)")
    g("v_lshlrev_b32 v5, 12, v1")
    g("v_mov_b32 v6, 1")
    g("s_lshl_b32 s4, s2, 2")
    g("s_lshl_b32 s5, s3, 10")
    g("s_add_u32 s4, s4, s5")
    g(f"s_add_u32 s4, s4, {FLC_OFF}")
    g(f"s_mov_b64 exec, 0x{(1<<NREP)-1:x}")
    g("buffer_store_dword v6, v5, s[64:67], s4 offen sc1")
    g("s_mov_b64 exec, -1")
    g(f"s_add_u32 s4, s15, {FLC_OFF}")
    g("s_mov_b32 s82, 0")
    g("LC_pollC:")
    if not os.environ.get("NOSLEEP"):
        g("s_sleep 1")
    g("buffer_load_dword v6, v231, s[64:67], s4 offen sc1")
    g("s_waitcnt vmcnt(0)")
    g("v_cmp_ne_u32 vcc, 1, v6")
    g("s_add_u32 s82, s82, 1")
    g(f"s_cmp_gt_u32 s82, {SPIN_MAX}")
    g("s_cbranch_scc1 LC_pollC2")
    g("s_cbranch_vccnz LC_pollC")
    g("LC_pollC2:")
    stamp(g, 20)
    g(f"s_add_u32 s5, s83, {SPART_OFF}")
    for i in range(8):
        g(f"buffer_load_dword v{16+i}, v230, s[64:67], s5 offen sc1")
        g("s_add_u32 s5, s5, 65536")
    g("v_mov_b32 v24, v229")
    g("s_waitcnt vmcnt(0)")
    for i in range(1, 8):
        g(f"v_add_f32 v16, v16, v{16+i}")
    stamp(g, 16)
    for msk in (8, 16):
        g(f"ds_swizzle_b32 v17, v16 offset:{(msk<<10)|0x1f}")
        g(f"ds_swizzle_b32 v25, v24 offset:{(msk<<10)|0x1f}")
        g("s_waitcnt lgkmcnt(0)")
        g("v_add_f32 v16, v16, v17")
        g("v_add_f32 v24, v24, v25")
    g("v_mov_b32 v17, v16")
    g("v_mov_b32 v25, v24")
    g("s_nop 1")
    g("v_permlane32_swap_b32 v16, v17")
    g("v_permlane32_swap_b32 v24, v25")
    g("s_nop 1")
    g("v_add_f32 v16, v16, v17")
    g("v_add_f32 v24, v24, v25")
    g("v_and_b32 v11, 7, v1")
    g("v_lshlrev_b32 v11, 2, v11")
    g(f"v_add_u32 v11, {L_FIN}, v11")
    g("s_lshl_b32 s4, s3, 6")
    g("v_add_u32 v12, s4, v11")
    g("ds_write_b32 v12, v16")
    g("ds_write_b32 v12, v24 offset:32")
    g("s_waitcnt lgkmcnt(0)")
    signal(g, 10)
    g("s_cmp_lg_u32 s3, 0")
    g("s_cbranch_scc1 L_done")
    lwait(g, 10, 4)
    for w in range(4):
        g(f"ds_read_b32 v{64+w}, v11 offset:{w*64}")
        g(f"ds_read_b32 v{96+w}, v11 offset:{w*64+32}")
    srd(g, 48, 38, 4096)
    g("s_waitcnt lgkmcnt(0)")
    g("v_add_f32 v64, v64, v65\nv_add_f32 v66, v66, v67\nv_add_f32 v64, v64, v66")
    g("v_add_f32 v96, v96, v97\nv_add_f32 v98, v98, v99\nv_add_f32 v96, v96, v98")
    rb(g, 64, 12)
    rb(g, 96, 12)
    g("v_mul_f32 v96, v96, v13")
    rb(g, 96, 12)
    g("v_add_f32 v96, v245, v96")
    rb(g, 96, 12)
    silu_inplace(g, 96, 14)
    rb(g, 96, 12)
    g("v_mul_f32 v64, v64, v96")
    rb(g, 64, 12)
    g("v_add_f32 v64, v244, v64")
    g("v_cvt_pk_bf16_f32 v64, v64, v64")
    g("s_mov_b64 exec, 0xff")
    g("buffer_store_short v64, v246, s[48:51], s78 offen")
    stamp_flush(g, 0)

def kdesc(g, name, vgpr):
    g.raw(".p2align 6")
    g.raw(f".amdhsa_kernel {name}")
    g.raw(f"  .amdhsa_next_free_vgpr {vgpr}")
    g.raw("  .amdhsa_next_free_sgpr 102")
    g.raw(f"  .amdhsa_accum_offset {vgpr}")
    g.raw("  .amdhsa_group_segment_fixed_size 0")
    g.raw("  .amdhsa_kernarg_size 112")
    g.raw("  .amdhsa_user_sgpr_count 2")
    g.raw("  .amdhsa_user_sgpr_kernarg_segment_ptr 1")
    g.raw("  .amdhsa_system_sgpr_workgroup_id_x 1")
    g.raw("  .amdhsa_float_denorm_mode_32 3")
    g.raw(".end_amdhsa_kernel")

def main(out):
    g = G()
    g.L = [f"; @launch kernel=k0_kernel grid=(256,1,1) block=(256,1,1) lds={K0_LDS}",
           f"; @launch kernel=k1_kernel grid=(256,1,1) block=(512,1,1) lds={LDS_TOTAL}" if not os.environ.get("ONLYK0") else ";",
           '.amdgcn_target "amdgcn-amd-amdhsa--gfx950"', ".text"]
    gen_k0(g)
    gen_kernel(g)
    g.raw('.section .rodata,"a"')
    kdesc(g, "k0_kernel", 136)
    kdesc(g, "k1_kernel", 256)
    open(out, "w").write("\n".join(g.L) + "\n")

if __name__ == "__main__":
    if len(sys.argv) > 2 and sys.argv[2] == "debug":
        DEBUG = True
    main(sys.argv[1])
```
